```python
import torch

def _softmax(x, axis=-1):
    return torch.softmax(x, dim=axis)

def _gelu(x):
    return torch.nn.functional.gelu(x, approximate='tanh')

def _silu(x):
    return torch.nn.functional.silu(x)

def _sigmoid(x):
    return torch.sigmoid(x)

def _layernorm(x, axis=-1, eps=1e-05):
    m = x.mean(dim=axis, keepdim=True)
    v = x.var(dim=axis, keepdim=True, unbiased=False)
    return (x - m) / torch.sqrt(v + eps)

def _scatter_add(tgt, idx, src, axis=0):
    return tgt.clone().index_add_(axis, idx, src)

def _segment_sum(src, seg, n):
    out = torch.zeros((n,) + src.shape[1:], dtype=src.dtype)
    return out.index_add_(0, seg, src)

def _pad(x, pw):
    flat = tuple((v for pair in reversed(pw) for v in pair))
    return torch.nn.functional.pad(x, flat)
kernel_name = 'parallel_sum__ssm_conv_s4d__mixer_gmlp__prompt'

def setup_inputs():

    _w = lambda a: (lambda t: t.to(torch.bfloat16) if t.is_floating_point() else t)(torch.as_tensor(a))

    def _A_setup():
        Bsz, L, D, N = (1, 2048, 448, 256)
        return {'u': _w((lambda *s: torch.randn(*s, dtype=torch.bfloat16) * 0.05)(Bsz, L, D)), 'log_A_real': _w((lambda *s: torch.randn(*s, dtype=torch.bfloat16) * 12.8)(D, N) * 0.5), 'A_imag': _w((lambda *s: torch.randn(*s, dtype=torch.bfloat16) * 0.1)(D, N) * 3.14), 'C_real': _w((lambda *s: torch.randn(*s, dtype=torch.bfloat16) * 3.2)(D, N) / N ** 0.5), 'C_imag': _w((lambda *s: torch.randn(*s, dtype=torch.bfloat16) * 3.2)(D, N) / N ** 0.5), 'log_dt': _w((lambda *s: torch.randn(*s, dtype=torch.bfloat16) * 0.1)(D) * 0.5 - 4.0), 'D_skip': _w((lambda *s: torch.randn(*s, dtype=torch.bfloat16) * 0.8)(D))}
    _A_in = _A_setup()

    def _B_setup():
        B, S, D, F = (1, 2048, 448, 1792)
        Fh = F // 2
        return {'x': _w((lambda *s: torch.randn(*s, dtype=torch.bfloat16) * 0.05)(B, S, D)), 'w_in': _w((lambda *s: torch.randn(*s, dtype=torch.bfloat16) * 0.4)(D, 2 * Fh)), 'w_sp': _w(0.01 * (lambda *s: torch.randn(*s, dtype=torch.bfloat16) * 0.4)(S, S)), 'b_sp': _w(1.0 + 0.01 * (lambda *s: torch.randn(*s, dtype=torch.bfloat16) * 0.05)(S)), 'w_out': _w((lambda *s: torch.randn(*s, dtype=torch.bfloat16) * 0.05)(Fh, D))}
    _B_in = _B_setup()
    return {'A_u': _A_in['u'], 'A_log_A_real': _A_in['log_A_real'], 'A_A_imag': _A_in['A_imag'], 'A_C_real': _A_in['C_real'], 'A_C_imag': _A_in['C_imag'], 'A_log_dt': _A_in['log_dt'], 'A_D_skip': _A_in['D_skip'], 'B_x': _B_in['x'], 'B_w_in': _B_in['w_in'], 'B_w_sp': _B_in['w_sp'], 'B_b_sp': _B_in['b_sp'], 'B_w_out': _B_in['w_out']}

def reference(A_u, A_log_A_real, A_A_imag, A_C_real, A_C_imag, A_log_dt, A_D_skip, B_x, B_w_in, B_w_sp, B_b_sp, B_w_out):

    def _A_ref(u, log_A_real, A_imag, C_real, C_imag, log_dt, D_skip):
        L = u.shape[1]
        dt = torch.exp(log_dt)
        A = -torch.exp(log_A_real) + 1j * A_imag
        C = (C_real + 1j * C_imag) * dt[:, None]
        pos = (lambda x, dt: x.to(dt))(torch.arange(L), log_dt.dtype)
        P = torch.exp((A * dt[:, None])[:, :, None] * pos[None, None, :])
        K = 2.0 * torch.einsum('dn,dnl->dl', C, P).real
        L2 = 2 * L
        u_t = (lambda x, *d: x.permute(*d))(u, 0, 2, 1)
        Kf = (lambda x, *a, **k: torch.fft.rfft(x.float(), *a, **k))(K, L2)
        Uf = (lambda x, *a, **k: torch.fft.rfft(x.float(), *a, **k))(u_t, L2)
        y = (lambda x, *a, **k: torch.fft.irfft(x, *a, **k).to(torch.bfloat16))(Uf * Kf[None, :, :], L2)[:, :, :L]
        y = (lambda x, *d: x.permute(*d))(y, 0, 2, 1)
        return y + u * D_skip[None, None, :]

    def _B_ref(x, w_in, w_sp, b_sp, w_out):
        B, S, D = x.shape
        F = w_in.shape[-1]
        Fh = F // 2
        z = _gelu(torch.einsum('bsd,df->bsf', x, w_in))
        z1 = z[..., :Fh].clone()
        z2 = _layernorm(z[..., Fh:], axis=-1)
        g = torch.einsum('ts,bsf->btf', w_sp, z2) + b_sp[None, :, None]
        return torch.einsum('bsf,fd->bsd', z1 * g, w_out)
    x = A_u
    xn = _layernorm(x, axis=-1)
    return x + _A_ref(xn, A_log_A_real, A_A_imag, A_C_real, A_C_imag, A_log_dt, A_D_skip) + _B_ref(xn, B_w_in, B_w_sp, B_b_sp, B_w_out)
```

```python
import re
TRANS = ("v_exp_f32", "v_log_f32", "v_rcp_f32", "v_rsq_f32", "v_sqrt_f32", "v_sin_f32", "v_cos_f32")
REG_RE = re.compile(r"^(-?)(abs\()?([vas])(\d+)\)?$|^(-?)([vas])\[(\d+):(\d+)\]$")

def parse_reg(tok):
    tok = tok.strip()
    if tok in ("vcc",): return [("s", "vcc")]
    if tok in ("exec",): return [("s", "exec")]
    if tok == "m0": return [("s", "m0")]
    m = REG_RE.match(tok)
    if not m: return []
    if m.group(3): return [(m.group(3), int(m.group(4)))]
    return [(m.group(6), i) for i in range(int(m.group(7)), int(m.group(8)) + 1)]

def split_ops(rest):
    ops, cur, depth = [], "", 0
    for ch in rest:
        if ch in "[(": depth += 1
        if ch in "])": depth -= 1
        if ch == "," and depth == 0:
            ops.append(cur.strip()); cur = ""
        else: cur += ch
    if cur.strip(): ops.append(cur.strip())
    mods = ""
    if ops:
        last = ops[-1].split(None, 1)
        if len(last) == 2: ops[-1], mods = last[0], last[1]
    return ops, mods

class Ins:
    def __init__(s, text):
        s.text = text
        t = text.split(";")[0].strip()
        s.op = t.split(None, 1)[0] if t else ""
        rest = t.split(None, 1)[1] if len(t.split(None, 1)) > 1 else ""
        s.ops, s.mods = split_ops(rest)
        s.kind = "other"; s.w = []; s.r = []; s.srcc = []; s.ab = []; s.passes = 0
        op = s.op; R = [parse_reg(o) for o in s.ops]
        if op.endswith(":") or op.startswith("."): s.kind = "label"; return
        if op.startswith("v_mfma"):
            s.kind = "mfma"; s.w = R[0]; s.ab = R[1] + R[2]; s.srcc = R[3]; s.r = s.ab + s.srcc
            s.passes = 8 if "32x32x16" in op else 4
            if "32x32x2_f32" in op or "16x16x4_f32" in op: raise Exception("sgemm not modelled")
        elif op.startswith("v_"):
            s.kind = "valu"; s.w = list(R[0]); s.r = sum(R[1:], [])
            if op.startswith("v_permlane") and "swap" in op: s.w = R[0] + R[1]; s.r = R[0] + R[1]
            if op.startswith(("v_fmac", "v_dot2c", "v_pk_fmac")): s.r += R[0]
            if op.startswith(("v_add_co", "v_sub_co", "v_addc_co", "v_subb_co")): s.w += R[1]; s.r = sum(R[2:], [])
            if op.startswith("v_cndmask") and len(R) == 3: s.r += [("s", "vcc")]
            if "_sdwa" in op or "dpp" in op: s.r += R[0]
            if op.startswith("v_writelane"): s.r += R[0]
        elif op.startswith(("buffer_", "global_")):
            s.kind = "vmem"
            if " lds" in (" " + s.mods) or "load_lds" in op:
                s.r = sum(R, []) + [("s", "m0")]; s.lds = True
            elif "load" in op:
                s.w = R[0]; s.r = sum(R[1:], [])
                if "d16" in op: s.r += R[0]
            elif "atomic" in op:
                s.r = sum(R, [])
                if "sc0" in s.mods: s.w = R[0]
            else:
                s.r = sum(R, [])
                s.wide = ("x4" in op or "x3" in op)
                s.data = R[0] if op.startswith("buffer_") else R[1]
        elif op.startswith("ds_"):
            s.kind = "ds"
            if "read" in op or "permute" in op or "swizzle" in op or "_rtn" in op:
                s.w = R[0]; s.r = sum(R[1:], [])
                if "d16" in op: s.r += R[0]
            else: s.r = sum(R, [])
        elif op.startswith("s_"):
            s.kind = "salu"
            if op in ("s_nop", "s_waitcnt", "s_barrier", "s_endpgm", "s_sleep", "s_setprio") or op.startswith(("s_cbranch", "s_branch", "s_cmp", "s_bitcmp")):
                s.r = sum(R, [])
            else:
                s.w = R[0]; s.r = sum(R[1:], [])
                if "saveexec" in op: s.w = s.w + [("s", "exec")]
        s.trans = op.replace("_e32", "").replace("_e64", "") in TRANS
    def states(s):
        if s.kind == "label" or not s.op: return 0
        if s.op == "s_nop": return int(s.ops[0], 0) + 1
        return 1

def need(p, c):
    n = 0
    pw, cw, cr = set(p.w), set(c.w), set(c.r)
    if p.kind == "valu":
        vw = {x for x in pw if x[0] in "va"}; sw = {x for x in pw if x[0] == "s"}
        if c.kind == "mfma" and vw & cr: n = max(n, 2)
        if c.kind == "valu":
            if p.trans and not c.trans and vw & cr: n = max(n, 1)
            if c.op.startswith(("v_readfirstlane", "v_readlane")) and vw & cr: n = max(n, 1)
            if (c.op.startswith("v_permlane") or "dpp" in c.op) and vw & cr: n = max(n, 2)
            if sw & cr: n = max(n, 4 if c.op.startswith(("v_readlane", "v_writelane")) else 2)
            if ("_sdwa" in p.op or "op_sel" in p.mods) and not p.op.startswith("v_pk") and vw & (cr | cw): n = max(n, 1)
            if p.op.startswith("v_dot2") and vw & (cr | cw) and not (c.op == p.op): n = max(n, 3)
        if p.op.startswith("v_dot2") and c.kind in ("ds", "vmem", "mfma") and vw & cr: n = max(n, 3)
        if c.kind == "vmem" and sw & cr: n = max(n, 5)
        if c.kind == "salu" and sw & cr: n = max(n, 1)
    if p.kind == "mfma":
        big = {4: 8, 8: 12}[p.passes]
        if c.kind == "mfma":
            if pw & set(c.ab): n = max(n, big)
            if pw & set(c.srcc):
                if not (c.srcc == p.w and c.passes == p.passes): n = max(n, big - 2)
            elif pw & cw: n = max(n, big)
        elif c.kind in ("valu", "vmem", "ds"):
            if pw & (cr | cw): n = max(n, big)
            if c.kind == "valu" and set(p.srcc) & cw: n = max(n, {4: 3, 8: 7}[p.passes])
    if p.kind == "salu":
        if ("s", "m0") in pw and c.kind == "vmem" and getattr(c, "lds", False): n = max(n, 1)
    if p.kind == "vmem" and getattr(p, "wide", False):
        if set(p.data) & cw: n = max(n, 2 if c.kind == "valu" else 1)
    return n

class Asm:
    def __init__(s): s.lines = []
    def __call__(s, text):
        for l in text.strip("\n").split("\n"):
            l = l.strip()
            if l: s.lines.append(l)
    def label(s, name): s.lines.append(name + ":")
    def finish(s):
        out = []; hist = []
        for l in s.lines:
            ins = Ins(l)
            if ins.kind == "label" or not ins.op:
                out.append(l)
                continue
            req = 0; dist = 0
            for p in reversed(hist):
                if dist >= 20: break
                k = need(p, ins)
                if k > dist: req = max(req, k - dist)
                dist += p.states()
            while req > 0:
                k = min(req, 16)
                nop = Ins("s_nop %d" % (k - 1)); out.append("    " + nop.text); hist.append(nop); req -= k
            out.append("    " + l); hist.append(ins)
            if len(hist) > 64: hist = hist[-40:]
        return "\n".join(out) + "\n"

def kernel_desc(name, vgpr, sgpr=102, accum=None):
    if accum is None: accum = (vgpr + 3) // 4 * 4
    return f""".section .rodata,"a"
.p2align 6
.amdhsa_kernel {name}
  .amdhsa_next_free_vgpr {vgpr}
  .amdhsa_next_free_sgpr {sgpr}
  .amdhsa_accum_offset {accum}
  .amdhsa_group_segment_fixed_size 0
  .amdhsa_kernarg_size 120
  .amdhsa_user_sgpr_count 2
  .amdhsa_user_sgpr_kernarg_segment_ptr 1
  .amdhsa_system_sgpr_workgroup_id_x 1
.end_amdhsa_kernel
"""
```

```python
from asmlib import *
Z2F = 0x0000000
Z1F = 0x0400000
HF  = 0x0800000
XNT = 0x0C00000
YT  = 0x0E00000
WOF = 0x1000000
RST = 0x1100000
CSUM = 0x1110000
PST = 0x1200000
KPG = 0x1400000
AFLAG = 0x1120000
TAGW = 0x1130000
WS_BYTES = 0x10000000
KA = dict(u=0, lar=8, aim=16, cre=24, cim=32, ldt=40, dsk=48, bx=56, win=64, wsp=72, bsp=80, wout=88, out=96, dbg=104, ws=112)
SZ = dict(u=1835008, lar=229376, aim=229376, cre=229376, cim=229376, ldt=896, dsk=896, win=1605632, wsp=8388608,
          bsp=4096, wout=802816, out=1835008, dbg=256, ws=WS_BYTES)

def f32hex(x):
    import struct
    return "0x%08x" % struct.unpack("<I", struct.pack("<f", x))[0]

def load_srds(E, items):
    for nm, b in items:
        E(f"s_load_dwordx2 s[{b}:{b+1}], s[0:1], {KA[nm]}")
    for nm, b in items:
        E(f"s_mov_b32 s{b+2}, {SZ[nm]}")
        E(f"s_mov_b32 s{b+3}, 0x00020000")

def prologue(E, name):
    E(f".globl {name}")
    E(".p2align 8")
    E(f".type {name},@function")
    E.label(name)

def bf16r(E, dst, src, tmp=None):
    E(f"v_cvt_pk_bf16_f32 {dst}, {src}, {src}")
    E(f"v_lshlrev_b32 {dst}, 16, {dst}")

GELU_K1 = -2.0 * 0.7978845608028654 * 1.4426950408889634
GELU_K2 = GELU_K1 * 0.044715

import os
STAMPS = os.environ.get("STAMPS", "0") == "1"
STAMP_OFF = 0x2000000
def stamp(E, idx, base=60):
    if not STAMPS: return
    E(f"s_memtime s[{base+2*idx}:{base+2*idx+1}]")
    if idx == 0: E("s_memrealtime s[98:99]")
def stamp_flush(E, n, sws, kidx, base=60, wave_sreg="s28"):
    if not STAMPS: return
    E(f"s_memrealtime s[{base+2*n}:{base+2*n+1}]")
    E("s_waitcnt lgkmcnt(0)")
    E(f"s_lshl_b32 s58, s2, 3")
    E(f"s_add_u32 s58, s58, {wave_sreg}")
    E(f"s_lshl_b32 s58, s58, 7")
    E(f"s_add_u32 s58, s58, {STAMP_OFF + kidx*0x100000}")
    E("s_mov_b64 exec, 1")
    E("v_mov_b32 v1, 0")
    for i in range(n + 1):
        E(f"v_mov_b32 v0, s{base+2*i}")
        E(f"buffer_store_dword v0, v1, s[{sws}:{sws+3}], s58 offen offset:{4*i}")
    E(f"v_mov_b32 v0, s98")
    E(f"buffer_store_dword v0, v1, s[{sws}:{sws+3}], s58 offen offset:{4*(n+1)}")
    E("s_mov_b64 exec, -1")
```

```python
from gen_common import *

def gen_k1(E):
    prologue(E, "k1_kernel")
    SX, SW, SWS, SDB, SWO = 8, 12, 16, 20, 24
    E("s_cmp_ge_u32 s2, 256")
    E("s_cbranch_scc1 K1_END")
    load_srds(E, [("u", SX), ("win", SW), ("ws", SWS), ("dbg", SDB), ("wout", SWO)])
    E("v_and_b32 v1, 63, v0")
    E("v_lshrrev_b32 v2, 6, v0")
    E("v_readfirstlane_b32 s28, v2")
    stamp(E, 0)
    E("s_cmp_ge_u32 s2, 224")
    E("s_cbranch_scc1 K1_AUX")
    E("s_and_b32 s33, s2, 7")
    E("s_lshr_b32 s34, s2, 3")
    E("s_lshr_b32 s29, s33, 1")
    E("s_lshl_b32 s29, s29, 2")
    E("s_and_b32 s35, s34, 3")
    E("s_add_u32 s29, s29, s35")
    E("s_and_b32 s30, s33, 1")
    E("s_mul_i32 s30, s30, 7")
    E("s_lshr_b32 s35, s34, 2")
    E("s_add_u32 s30, s30, s35")
    E("s_and_b32 s31, s28, 3")
    E("s_lshr_b32 s32, s28, 2")
    E("v_lshrrev_b32 v6, 3, v1")
    E("v_and_b32 v7, 7, v1")
    E("v_lshrrev_b32 v8, 1, v6")
    E("v_xor_b32 v9, v7, v8")
    E("v_xor_b32 v10, 4, v9")
    E("s_lshl_b32 s33, s29, 7")
    E("s_lshl_b32 s34, s28, 4")
    E("s_add_u32 s34, s34, s33")
    E("v_add_u32 v11, s34, v6")
    E("v_mul_u32_u24 v11, 896, v11")
    E("v_lshl_add_u32 v3, v9, 4, v11")
    E("v_lshl_add_u32 v4, v10, 4, v11")
    E("v_add_u32 v4, 7168, v4")
    E("v_and_b32 v9, 1, v8")
    E("v_lshlrev_b32 v9, 2, v9")
    E("v_xor_b32 v9, v7, v9")
    E("s_lshl_b32 s34, s28, 3")
    E("v_add_u32 v11, s34, v6")
    E("v_mul_u32_u24 v11, 3584, v11")
    E("v_lshl_add_u32 v5, v9, 4, v11")
    E("s_lshl_b32 s34, s30, 7")
    E("v_add_u32 v5, s34, v5")
    E("s_lshl_b32 s36, s28, 11")
    E("s_lshl_b32 s37, s28, 10")
    E("s_waitcnt lgkmcnt(0)")
    def issue(c):
        slot = (c % 4) * 32768
        E(f"s_add_u32 m0, s36, {slot}")
        E(f"s_mov_b32 s40, {c*128}")
        E(f"buffer_load_dwordx4 v3, s[{SX}:{SX+3}], s40 offen lds")
        E(f"s_add_u32 m0, s36, {slot+1024}")
        E(f"s_mov_b32 s41, {c*229376+1792}")
        E(f"buffer_load_dwordx4 v4, s[{SX}:{SX+3}], s40 offen lds")
        E(f"s_add_u32 m0, s37, {slot+16384}")
        E(f"s_mov_b32 s42, {c*229376}")
        E(f"buffer_load_dwordx4 v5, s[{SW}:{SW+3}], s41 offen lds")
        E(f"s_add_u32 m0, s37, {slot+24576}")
        E("s_nop 0")
        E(f"buffer_load_dwordx4 v5, s[{SW}:{SW+3}], s42 offen lds")
    for c in range(4): issue(c)
    E("v_and_b32 v6, 31, v1")
    E("v_lshrrev_b32 v7, 5, v1")
    E("v_bfe_u32 v8, v6, 1, 3")
    E("v_xor_b32 v8, v8, v7")
    E("s_lshl_b32 s34, s31, 5")
    E("v_add_u32 v9, s34, v6")
    E("v_lshlrev_b32 v9, 7, v9")
    E("v_lshl_add_u32 v12, v8, 4, v9")
    for j in range(1, 4): E(f"v_xor_b32 v{12+j}, {32*j}, v12")
    for j in range(4): E(f"v_add_u32 v{16+j}, 0x10000, v{12+j}")
    E("v_bfe_u32 v8, v1, 2, 2")
    E("v_lshl_add_u32 v9, v7, 3, v8")
    E("v_lshlrev_b32 v9, 7, v9")
    E("v_bfe_u32 v10, v1, 4, 1")
    E("v_lshlrev_b32 v10, 1, v10")
    E("v_bfe_u32 v11, v1, 1, 1")
    E("v_add_u32 v10, v10, v11")
    E("s_lshl_b32 s34, s32, 2")
    E("v_add_u32 v10, s34, v10")
    E("v_lshrrev_b32 v8, 1, v8")
    E("v_lshlrev_b32 v8, 2, v8")
    E("v_xor_b32 v10, v10, v8")
    E("v_lshl_add_u32 v9, v10, 4, v9")
    E("v_and_b32 v11, 1, v1")
    E("v_lshl_add_u32 v20, v11, 3, v9")
    E("v_add_u32 v20, 16384, v20")
    E("v_add_u32 v21, 0x10000, v20")
    E("v_bfe_u32 v8, v1, 2, 2")
    E("v_bfe_u32 v10, v1, 4, 1")
    E("v_lshl_add_u32 v8, v10, 3, v8")
    E("s_and_b32 s34, s30, 1")
    E("s_lshl_b32 s34, s34, 2")
    E("v_lshrrev_b32 v10, 5, v1")
    E("v_lshlrev_b32 v10, 1, v10")
    E("v_bfe_u32 v11, v1, 1, 1")
    E("v_add3_u32 v10, v10, v11, s34")
    E("v_lshrrev_b32 v11, 1, v8")
    E("v_xor_b32 v10, v10, v11")
    E("v_lshlrev_b32 v8, 7, v8")
    E("v_lshl_add_u32 v8, v10, 4, v8")
    E("v_and_b32 v11, 1, v1")
    E("v_lshl_add_u32 v8, v11, 3, v8")
    E("v_add_u32 v22, s36, v8")
    E("v_xor_b32 v23, 32, v22")
    E("v_add_u32 v23, 512, v23")
    E("s_lshr_b32 s38, s30, 1")
    E("s_and_b32 s34, s38, 3")
    E("s_lshl_b32 s34, s34, 15")
    E("v_add_u32 v22, s34, v22")
    E("v_add_u32 v23, s34, v23")
    E("s_lshl_b32 s34, s29, 1")
    E("v_mov_b32 v24, s34")
    E("s_add_u32 s34, s34, 1")
    E("v_writelane_b32 v24, s34, 1")
    E("v_writelane_b32 v24, s30, 2")
    E("s_add_u32 s34, s30, 14")
    E("v_writelane_b32 v24, s34, 3")
    E("v_lshlrev_b32 v24, 7, v24")
    E("v_mov_b32 v30, 0")
    E(f"s_mov_b32 s44, {AFLAG}")
    ACC2, ACC1, FR = 32, 48, 64
    XG = 26
    waits = [12, 8, 8, 8, 8, 4, 0]
    for c in range(7):
        slot = c % 4
        hi = slot >= 2
        so = (slot & 1) * 32768
        E(f"s_waitcnt vmcnt({waits[c]})")
        if c == 6:
            E("s_cmp_lg_u32 s28, 0")
            E("s_cbranch_scc1 K1_POLL1_OK")
            E("s_mov_b32 s46, 0")
            E("s_mov_b64 exec, 15")
            E.label("K1_POLL1")
            E("v_cmp_eq_u32 vcc, v25, v165")
            E("v_cmp_eq_u32 s[34:35], 1, v164")
            E("s_nop 1")
            E("s_and_b32 s34, vcc_lo, s34")
            E("s_cmp_eq_u32 s34, 15")
            E("s_cbranch_scc1 K1_POLL1_DONE")
            E("s_sleep 4")
            E(f"buffer_load_dword v25, v24, s[{SWS}:{SWS+3}], s44 offen sc1")
            E(f"buffer_load_dwordx2 v[164:165], v30, s[{SDB}:{SDB+3}], 0 offen sc1")
            E("s_add_u32 s46, s46, 1")
            E("s_cmp_lt_u32 s46, 0x40000")
            E("s_waitcnt vmcnt(0)")
            E("s_cbranch_scc1 K1_POLL1")
            E.label("K1_POLL1_DONE")
            E("v_mov_b32 v25, 0x20000")
            E("ds_write_b32 v25, v165")
            E("s_mov_b64 exec, -1")
            E("s_waitcnt lgkmcnt(0)")
            E.label("K1_POLL1_OK")
            stamp(E, 4)
        E("s_barrier")
        if c in (0, 3, 6): stamp(E, {0: 1, 3: 2, 6: 3}[c])
        if 1 <= c <= 3: issue(c + 3)
        if c == 5:
            E("s_cmp_lg_u32 s28, 0")
            E("s_cbranch_scc1 K1_NOPOLL")
            E("s_mov_b64 exec, 15")
            E(f"buffer_load_dword v25, v24, s[{SWS}:{SWS+3}], s44 offen sc1")
            E(f"buffer_load_dwordx2 v[164:165], v30, s[{SDB}:{SDB+3}], 0 offen sc1")
            E("s_mov_b64 exec, -1")
            E.label("K1_NOPOLL")
        if c == 6:
            E("v_mov_b32 v25, 0x20000")
            E("ds_read_b32 v31, v25")
            E("v_and_b32 v6, 31, v1")
            E("s_lshl_b32 s34, s31, 5")
            E("s_add_u32 s34, s34, s33")
            E("v_add_lshl_u32 v6, v6, s34, 3")
            E(f"s_mov_b32 s40, {RST}")
            E(f"buffer_load_dwordx2 v[112:113], v6, s[{SWS}:{SWS+3}], s40 offen sc1")
            E("v_lshrrev_b32 v7, 5, v1")
            E("v_lshlrev_b32 v7, 4, v7")
            E("s_lshl_b32 s34, s30, 8")
            E("s_lshl_b32 s35, s32, 7")
            E("s_add_u32 s34, s34, s35")
            E(f"s_add_u32 s41, s34, {CSUM}")
            E(f"s_add_u32 s42, s34, {CSUM+896*4}")
            for o in range(4):
                E(f"buffer_load_dwordx4 v[{116+4*o}:{119+4*o}], v7, s[{SWS}:{SWS+3}], s42 offen offset:{32*o} sc1")
            for o in range(4):
                E(f"buffer_load_dwordx4 v[{132+4*o}:{135+4*o}], v7, s[{SWS}:{SWS+3}], s41 offen offset:{32*o} sc1")
            E("v_bfe_u32 v6, v1, 4, 1")
            E("v_lshlrev_b32 v6, 6, v6")
            E("s_lshl_b32 s34, s28, 4")
            E("s_add_u32 s34, s34, s33")
            E("s_lshl_b32 s34, s34, 3")
            E(f"s_add_u32 s34, s34, {RST}")
            for o in range(4):
                E(f"buffer_load_dwordx4 v[{148+4*o}:{151+4*o}], v6, s[{SWS}:{SWS+3}], s34 offen offset:{16*o} sc1")
        E(f"s_cmp_lg_u32 s38, {c}")
        E(f"s_cbranch_scc1 K1_NOGRAB{c}")
        E(f"ds_read_b64_tr_b16 v[{XG}:{XG+1}], v22")
        E(f"ds_read_b64_tr_b16 v[{XG+2}:{XG+3}], v23")
        E("s_waitcnt lgkmcnt(0)")
        E.label(f"K1_NOGRAB{c}")
        def reads(j):
            a = (16 if hi else 12) + j; b = 21 if hi else 20; f = FR + 12 * j
            E(f"ds_read_b128 v[{f}:{f+3}], v{a} offset:{so}")
            for h in range(2):
                E(f"ds_read_b64_tr_b16 v[{f+4+2*h}:{f+5+2*h}], v{b} offset:{so + j*2048 + h*512}")
            for h in range(2):
                E(f"ds_read_b64_tr_b16 v[{f+8+2*h}:{f+9+2*h}], v{b} offset:{so + 8192 + j*2048 + h*512}")
        def mm(j):
            f = FR + 12 * j
            c2 = "0" if (c == 0 and j == 0) else f"v[{ACC2}:{ACC2+15}]"
            c1 = "0" if (c == 0 and j == 0) else f"v[{ACC1}:{ACC1+15}]"
            E(f"v_mfma_f32_32x32x16_bf16 v[{ACC2}:{ACC2+15}], v[{f+4}:{f+7}], v[{f}:{f+3}], {c2}")
            E(f"v_mfma_f32_32x32x16_bf16 v[{ACC1}:{ACC1+15}], v[{f+8}:{f+11}], v[{f}:{f+3}], {c1}")
        reads(0); reads(1); reads(2)
        E("s_waitcnt lgkmcnt(10)"); mm(0)
        reads(3)
        E("s_waitcnt lgkmcnt(10)"); mm(1)
        E("s_waitcnt lgkmcnt(5)"); mm(2)
        E("s_waitcnt lgkmcnt(0)"); mm(3)
    E(f"s_mov_b32 s40, {f32hex(GELU_K1)}")
    E(f"s_mov_b32 s41, {f32hex(GELU_K2)}")
    E("v_mov_b32 v115, s40")
    E("s_waitcnt vmcnt(8)")
    stamp(E, 5)
    E("v_mul_f32 v114, v112, v113")
    def gelu_block(acc, cs, T):
        for base in (0, 8):
            idx = range(base, base + 8)
            for i in idx: E(f"v_mul_f32 v{cs+i}, v114, v{cs+i}")
            for i in idx: E(f"v_fma_f32 v{acc+i}, v{acc+i}, v113, -v{cs+i}")
            for i in idx: E(f"v_mul_f32 v{T+i}, v{acc+i}, v{acc+i}")
            for i in idx: E(f"v_fma_f32 v{T+i}, v{T+i}, s41, v115")
            for i in idx: E(f"v_mul_f32 v{T+i}, v{T+i}, v{acc+i}")
            for i in idx: E(f"v_exp_f32 v{T+i}, v{T+i}")
            for i in idx: E(f"v_add_f32 v{T+i}, 1.0, v{T+i}")
            for i in idx: E(f"v_rcp_f32 v{T+i}, v{T+i}")
            for i in idx: E(f"v_mul_f32 v{acc+i}, v{acc+i}, v{T+i}")
    gelu_block(ACC2, 116, 64)
    E(f"v_add_f32 v80, v{ACC2}, v{ACC2+1}")
    E(f"v_mul_f32 v81, v{ACC2}, v{ACC2}")
    E(f"v_add_f32 v82, v{ACC2+2}, v{ACC2+3}")
    E(f"v_mul_f32 v83, v{ACC2+1}, v{ACC2+1}")
    for i in range(2, 16):
        E(f"v_fmac_f32 v{81 + 2*(i&1)}, v{ACC2+i}, v{ACC2+i}")
        if i >= 4: E(f"v_add_f32 v{80 + 2*(i&1)}, v{80 + 2*(i&1)}, v{ACC2+i}")
    E("v_add_f32 v80, v80, v82")
    E("v_add_f32 v81, v81, v83")
    E("v_mov_b32 v82, v80")
    E("v_mov_b32 v83, v81")
    E("v_permlane32_swap_b32 v80, v82")
    E("v_permlane32_swap_b32 v81, v83")
    E("v_add_f32 v80, v80, v82")
    E("v_add_f32 v82, v81, v83")
    E("v_mov_b32 v81, v31")
    E("v_mov_b32 v83, v31")
    E("s_lshl_b32 s34, s29, 2")
    E("s_add_u32 s34, s34, s31")
    E("s_mov_b32 s39, s34")
    E("s_mul_i32 s34, s34, 14336")
    E(f"s_add_u32 s47, s34, {PST}")
    E("s_lshl_b32 s35, s30, 1")
    E("s_add_u32 s35, s35, s32")
    E("s_mov_b32 s48, s35")
    E("s_lshl_b32 s35, s35, 9")
    E("s_add_u32 s34, s47, s35")
    E("v_lshlrev_b32 v24, 4, v1")
    E("s_mov_b32 exec_hi, 0")
    E(f"buffer_store_dwordx4 v[80:83], v24, s[{SWS}:{SWS+3}], s34 offen sc1")
    E("s_mov_b64 exec, -1")
    stamp(E, 6)
    E("s_waitcnt vmcnt(1)")
    gelu_block(ACC1, 132, 64)
    for o in range(4):
        d = 64 + 4 * (o & 1) + 2 * (o >> 1)
        E(f"v_cvt_pk_bf16_f32 v{d}, v{ACC1+4*o}, v{ACC1+4*o+1}")
        E(f"v_cvt_pk_bf16_f32 v{d+1}, v{ACC1+4*o+2}, v{ACC1+4*o+3}")
    E("v_bfe_u32 v6, v1, 4, 1")
    E("v_mul_u32_u24 v6, 28672, v6")
    E("v_lshrrev_b32 v7, 5, v1")
    E("v_lshl_add_u32 v6, v7, 8, v6")
    E("v_and_b32 v7, 15, v1")
    E("v_lshl_add_u32 v6, v7, 4, v6")
    E("s_mul_i32 s34, s39, 57344")
    E("s_lshl_b32 s35, s48, 10")
    E("s_add_u32 s34, s34, s35")
    E(f"s_add_u32 s34, s34, {Z1F}")
    E(f"buffer_store_dwordx4 v[64:67], v6, s[{SWS}:{SWS+3}], s34 offen")
    E(f"buffer_store_dwordx4 v[68:71], v6, s[{SWS}:{SWS+3}], s34 offen offset:512")
    for i in range(8):
        src = XG + i // 2
        if i & 1: E(f"v_and_b32 v{72+i}, 0xffff0000, v{src}")
        else: E(f"v_lshlrev_b32 v{72+i}, 16, v{src}")
    for i in range(8): E(f"v_sub_f32 v{72+i}, v{72+i}, v{148+2*i}")
    for i in range(0, 8, 2): E(f"v_cvt_pk_bf16_f32 v{84+i//2}, v{72+i}, v{73+i}")
    for i in range(8):
        src = 84 + i // 2
        if i & 1: E(f"v_and_b32 v{72+i}, 0xffff0000, v{src}")
        else: E(f"v_lshlrev_b32 v{72+i}, 16, v{src}")
    for i in range(8): E(f"v_mul_f32 v{72+i}, v{72+i}, v{149+2*i}")
    for i in range(4): E(f"v_cvt_pk_bf16_f32 v{84+i}, v{79-2*i}, v{78-2*i}")
    E("v_lshrrev_b32 v6, 5, v1")
    E("v_and_b32 v7, 15, v1")
    E("v_lshl_add_u32 v6, v6, 4, v7")
    E("v_lshlrev_b32 v6, 12, v6")
    E("v_bfe_u32 v7, v1, 4, 1")
    E("v_lshlrev_b32 v7, 4, v7")
    E("v_sub_u32 v6, v6, v7")
    E("v_add_u32 v6, 16, v6")
    E("s_lshl_b32 s34, s28, 4")
    E("s_add_u32 s34, s34, s33")
    E("s_sub_u32 s34, 2032, s34")
    E("s_lshl_b32 s34, s34, 1")
    E("s_lshl_b32 s35, s30, 17")
    E("s_add_u32 s34, s34, s35")
    E(f"s_add_u32 s34, s34, {XNT}")
    E(f"buffer_store_dwordx4 v[84:87], v6, s[{SWS}:{SWS+3}], s34 offen")
    E("s_mov_b32 s46, 0")
    for q in range(1, 4): E(f"s_add_u32 s{52+q}, s47, {4096*q}")
    E("s_mov_b32 s52, s47")
    stamp(E, 7)
    def ld_gran():
        for i in range(14):
            E(f"buffer_load_dwordx4 v[{GR+4*i}:{GR+4*i+3}], v24, s[{SWS}:{SWS+3}], s{52+i//4} offen offset:{1024*(i%4)} sc1")
    GR = 112
    ld_gran()
    E("v_and_b32 v6, 31, v1")
    E("v_mul_u32_u24 v6, 72, v6")
    E("v_lshrrev_b32 v7, 5, v1")
    E("v_lshl_add_u32 v6, v7, 3, v6")
    E("s_mul_i32 s34, s28, 2304")
    E("v_add_u32 v6, s34, v6")
    E("v_lshrrev_b32 v7, 4, v1")
    E("v_bfe_u32 v8, v1, 2, 2")
    E("v_lshl_add_u32 v7, v7, 3, v8")
    E("v_mul_u32_u24 v7, 72, v7")
    E("v_and_b32 v8, 3, v1")
    E("v_lshl_add_u32 v7, v8, 3, v7")
    E("v_add_u32 v7, s34, v7")
    E("s_barrier")
    E.label("K1_POLL2")
    E("s_waitcnt vmcnt(0)")
    E("v_mov_b32 v8, 0")
    for i in range(14):
        E(f"v_xor_b32 v{GR+4*i+1}, v31, v{GR+4*i+1}")
        E(f"v_xor_b32 v{GR+4*i+3}, v31, v{GR+4*i+3}")
        E(f"v_or3_b32 v8, v8, v{GR+4*i+1}, v{GR+4*i+3}")
    E("v_cmp_ne_u32 vcc, 0, v8")
    E("s_nop 4")
    E("s_cbranch_vccz K1_POLL2_OK")
    E("s_sleep 2")
    ld_gran()
    E("s_add_u32 s46, s46, 1")
    E("s_cmp_lt_u32 s46, 0x40000")
    E("s_cbranch_scc1 K1_POLL2")
    E("s_waitcnt vmcnt(0)")
    E.label("K1_POLL2_OK")
    stamp(E, 8)
    stamp(E, 9)
    regs = [GR + 4 * i for i in range(14)]
    while len(regs) > 1:
        nxt = []
        for i in range(0, len(regs) - 1, 2):
            E(f"v_add_f32 v{regs[i]}, v{regs[i]}, v{regs[i+1]}")
            E(f"v_add_f32 v{regs[i]+2}, v{regs[i]+2}, v{regs[i+1]+2}")
            nxt.append(regs[i])
        if len(regs) & 1: nxt.append(regs[-1])
        regs = nxt
    E("v_mov_b32 v116, v112")
    E("v_mov_b32 v117, v114")
    E("v_mov_b32 v118, v116")
    E("v_mov_b32 v119, v117")
    E("v_permlane32_swap_b32 v116, v118")
    E("v_permlane32_swap_b32 v117, v119")
    E("v_add_f32 v116, v116, v118")
    E("v_add_f32 v117, v117, v119")
    E(f"v_mul_f32 v116, {f32hex(1.0/896)}, v116")
    E(f"v_mul_f32 v117, {f32hex(1.0/896)}, v117")
    E("v_fma_f32 v117, -v116, v116, v117")
    E("v_max_f32 v117, 0, v117")
    bf16r(E, "v116", "v116"); bf16r(E, "v117", "v117")
    E(f"v_add_f32 v117, {f32hex(1e-5)}, v117")
    bf16r(E, "v117", "v117")
    E("v_sqrt_f32 v117, v117")
    bf16r(E, "v117", "v117")
    E("v_rcp_f32 v117, v117")
    E("v_mul_f32 v116, v116, v117")
    for i in range(16): E(f"v_fma_f32 v{ACC2+i}, v{ACC2+i}, v117, -v116")
    for i in range(8): E(f"v_cvt_pk_bf16_f32 v{64+i}, v{ACC2+2*i}, v{ACC2+2*i+1}")
    for o in range(4): E(f"ds_write_b64 v6, v[{64+2*o}:{65+2*o}] offset:{16*o}")
    E("s_waitcnt lgkmcnt(0)")
    for a in range(2):
        for h in range(2):
            E(f"ds_read_b64_tr_b16 v[{72+4*a+2*h}:{73+4*a+2*h}], v7 offset:{288*h+32*a}")
    E("v_lshlrev_b32 v8, 4, v1")
    for a in range(2):
        E("s_lshl_b32 s34, s48, 1")
        E(f"s_add_u32 s34, s34, {a}")
        E("s_mul_i32 s35, s34, 37")
        E("s_lshr_b32 s35, s35, 8")
        E("s_mul_i32 s40, s35, 7")
        E("s_sub_u32 s34, s34, s40")
        E("s_lshl_b32 s35, s35, 6")
        E("s_add_u32 s35, s35, s39")
        E("s_mul_i32 s35, s35, 7")
        E("s_add_u32 s34, s34, s35")
        E(f"s_lshl_b32 s{50+a}, s34, 10")
    E("s_waitcnt lgkmcnt(2)")
    E(f"buffer_store_dwordx4 v[72:75], v8, s[{SWS}:{SWS+3}], s50 offen")
    E("s_waitcnt lgkmcnt(0)")
    E(f"buffer_store_dwordx4 v[76:79], v8, s[{SWS}:{SWS+3}], s51 offen")
    stamp(E, 10)
    stamp_flush(E, 11, SWS, 0)
    E("s_endpgm")

    E.label("K1_AUX")
    E("s_sub_u32 s29, s2, 224")
    E("v_lshrrev_b32 v2, 3, v0")
    E("v_and_b32 v3, 7, v0")
    E("s_lshl_b32 s34, s29, 6")
    E("v_add_u32 v4, s34, v2")
    E("v_mul_u32_u24 v5, 896, v4")
    E("v_lshl_add_u32 v5, v3, 4, v5")
    E("v_mul_u32_u24 v6, 3584, v2")
    E("v_lshl_add_u32 v6, v3, 4, v6")
    E("s_lshl_b32 s35, s29, 7")
    E("v_add_u32 v6, s35, v6")
    E("s_waitcnt lgkmcnt(0)")
    E("v_mov_b32 v30, 0")
    E("s_cmp_lg_u32 s29, 31")
    E("s_cbranch_scc1 K1_AUX_NOTAG")
    E("s_cmp_lg_u32 s28, 0")
    E("s_cbranch_scc1 K1_AUX_NOTAG")
    E("s_mov_b64 exec, 1")
    E(f"s_mov_b32 s40, {TAGW}")
    E(f"buffer_load_dword v29, v30, s[{SWS}:{SWS+3}], s40 offen sc1")
    E("v_mov_b32 v28, 1")
    E("s_waitcnt vmcnt(0)")
    E("v_add_u32 v29, 1, v29")
    E(f"buffer_store_dwordx2 v[28:29], v30, s[{SDB}:{SDB+3}], 0 offen sc1")
    E(f"buffer_store_dword v29, v30, s[{SWS}:{SWS+3}], s40 offen sc1")
    E("s_waitcnt vmcnt(0)")
    E("s_mov_b64 exec, -1")
    E.label("K1_AUX_NOTAG")
    XR, WR = 32, 64
    for j in range(7): E(f"buffer_load_dwordx4 v[{XR+4*j}:{XR+4*j+3}], v5, s[{SX}:{SX+3}], 0 offen offset:{128*j}")
    for j in range(7):
        E(f"s_mov_b32 s40, {j*229376}")
        E(f"buffer_load_dwordx4 v[{WR+4*j}:{WR+4*j+3}], v6, s[{SW}:{SW+3}], s40 offen")
    E("v_lshlrev_b32 v7, 4, v1")
    E("s_mul_i32 s36, s29, 28672")
    E("s_lshl_b32 s37, s28, 10")
    E("s_add_u32 s36, s36, s37")
    for b in range(4):
        if b == 3:
            E("s_cmp_ge_u32 s28, 4")
            E("s_cbranch_scc1 K1_AUX_NODMA")
        E(f"s_add_u32 m0, s37, {32768 + 8192*b}")
        E(f"s_add_u32 s40, s36, {8192*b}")
        E(f"buffer_load_dwordx4 v7, s[{SWO}:{SWO+3}], s40 offen lds")
    E.label("K1_AUX_NODMA")
    E("s_waitcnt vmcnt(10)")
    stamp(E, 1)
    U = 96
    for j in range(28):
        E(f"v_lshlrev_b32 v{U+2*j}, 16, v{XR+j}")
        E(f"v_and_b32 v{U+2*j+1}, 0xffff0000, v{XR+j}")
    for k in range(4): E(f"v_add_f32 v{8+k}, v{U+k}, v{U+4+k}")
    for j in range(8, 56): E(f"v_add_f32 v{8+(j&3)}, v{8+(j&3)}, v{U+j}")
    def red8(r):
        E(f"v_add_f32 v{r}, v{r}, v{r+1}")
        E(f"v_add_f32 v{r+2}, v{r+2}, v{r+3}")
        E(f"v_add_f32 v{r}, v{r}, v{r+2}")
        E(f"v_add_f32_dpp v{r}, v{r}, v{r} quad_perm:[1,0,3,2] row_mask:0xf bank_mask:0xf")
        E(f"v_add_f32_dpp v{r}, v{r}, v{r} quad_perm:[2,3,0,1] row_mask:0xf bank_mask:0xf")
        E(f"v_add_f32_dpp v{r}, v{r}, v{r} row_half_mirror row_mask:0xf bank_mask:0xf")
    red8(8)
    E(f"v_mul_f32 v8, {f32hex(1.0/448)}, v8")
    for j in range(56): E(f"v_sub_f32 v{U+j}, v{U+j}, v8")
    for k in range(4): E(f"v_mul_f32 v{12+k}, v{U+k}, v{U+k}")
    for j in range(4, 56): E(f"v_fmac_f32 v{12+(j&3)}, v{U+j}, v{U+j}")
    red8(12)
    E(f"v_mul_f32 v9, {f32hex(1.0/448)}, v12")
    bf16r(E, "v8", "v8"); bf16r(E, "v9", "v9")
    E(f"v_add_f32 v9, {f32hex(1e-5)}, v9")
    bf16r(E, "v9", "v9")
    E("v_sqrt_f32 v9, v9")
    bf16r(E, "v9", "v9")
    E("v_rcp_f32 v9, v9")
    E("v_lshlrev_b32 v10, 3, v4")
    E(f"s_mov_b32 s40, {RST}")
    E("v_cmp_eq_u32 vcc, 0, v3")
    E("s_and_saveexec_b64 s[42:43], vcc")
    E(f"buffer_store_dwordx2 v[8:9], v10, s[{SWS}:{SWS+3}], s40 offen sc1")
    E("s_mov_b64 exec, -1")
    E("s_waitcnt vmcnt(4)")
    stamp(E, 2)
    for j in range(7):
        for k in range(4):
            r = WR + 4 * j + k
            if j == 0:
                E(f"v_lshlrev_b32 v{16+2*k}, 16, v{r}")
                E(f"v_and_b32 v{17+2*k}, 0xffff0000, v{r}")
            else:
                E(f"v_lshlrev_b32 v{U+2*k}, 16, v{r}")
                E(f"v_and_b32 v{U+2*k+1}, 0xffff0000, v{r}")
                E(f"v_add_f32 v{16+2*k}, v{16+2*k}, v{U+2*k}")
                E(f"v_add_f32 v{17+2*k}, v{17+2*k}, v{U+2*k+1}")
    E("v_mul_u32_u24 v10, 272, v2")
    E("v_lshl_add_u32 v10, v3, 5, v10")
    E("ds_write_b128 v10, v[16:19]")
    E("ds_write_b128 v10, v[20:23] offset:16")
    E("s_waitcnt lgkmcnt(0)")
    E("s_barrier")
    E("s_mul_i32 s34, s28, 2176")
    E("v_lshlrev_b32 v10, 2, v1")
    E("v_add_u32 v11, s34, v10")
    for k in range(8): E(f"ds_read_b32 v{16+k}, v11 offset:{272*k}")
    E("s_waitcnt lgkmcnt(0)")
    for k in (0, 2, 4, 6): E(f"v_add_f32 v{16+k}, v{16+k}, v{17+k}")
    E("v_add_f32 v16, v16, v18"); E("v_add_f32 v20, v20, v22"); E("v_add_f32 v16, v16, v20")
    E("s_lshl_b32 s34, s28, 8")
    E("v_add_u32 v11, s34, v10")
    E("ds_write_b32 v11, v16 offset:20480")
    E("s_waitcnt lgkmcnt(0)")
    E("s_barrier")
    E("s_cmp_lg_u32 s28, 0")
    E("s_cbranch_scc1 K1_AUX_W")
    E("s_cmp_ge_u32 s29, 28")
    E("s_cbranch_scc1 K1_AUX_W")
    for k in range(8): E(f"ds_read_b32 v{16+k}, v10 offset:{20480+256*k}")
    E("s_waitcnt lgkmcnt(0)")
    for k in (0, 2, 4, 6): E(f"v_add_f32 v{16+k}, v{16+k}, v{17+k}")
    E("v_add_f32 v16, v16, v18"); E("v_add_f32 v20, v20, v22"); E("v_add_f32 v16, v16, v20")
    E("s_lshl_b32 s34, s29, 8")
    E(f"s_add_u32 s34, s34, {CSUM}")
    E(f"buffer_store_dword v16, v10, s[{SWS}:{SWS+3}], s34 offen sc1")
    E.label("K1_AUX_W")
    stamp(E, 3)
    E("s_waitcnt vmcnt(0)")
    E("s_barrier")
    E("s_cmp_lg_u32 s28, 0")
    E("s_cbranch_scc1 K1_AUX_NOSIG")
    E("s_mov_b64 exec, 1")
    E("s_mov_b32 s46, 0")
    E.label("K1_AUX_TAG")
    E(f"buffer_load_dwordx2 v[28:29], v30, s[{SDB}:{SDB+3}], 0 offen sc1")
    E("s_add_u32 s46, s46, 1")
    E("s_waitcnt vmcnt(0)")
    E("v_cmp_eq_u32 vcc, 1, v28")
    E("s_nop 4")
    E("s_cbranch_vccnz K1_AUX_TAGOK")
    E("s_cmp_lt_u32 s46, 0x40000")
    E("s_cbranch_scc1 K1_AUX_TAG")
    E.label("K1_AUX_TAGOK")
    E("s_lshl_b32 s34, s29, 7")
    E(f"s_add_u32 s34, s34, {AFLAG}")
    E(f"buffer_store_dword v29, v30, s[{SWS}:{SWS+3}], s34 offen sc1")
    E("s_mov_b64 exec, -1")
    E.label("K1_AUX_NOSIG")
    stamp(E, 4)
    if STAMPS:
        for i in range(5, 11): stamp(E, i)
        E("v_mov_b32 v30, v1")
        stamp_flush(E, 11, SWS, 0)
        E("v_mov_b32 v1, v30")
    E("s_cmp_ge_u32 s29, 28")
    E("s_cbranch_scc1 K1_END")
    E("v_lshrrev_b32 v10, 2, v1")
    E("v_mul_u32_u24 v10, 896, v10")
    E("v_and_b32 v11, 3, v1")
    E("v_lshl_add_u32 v10, v11, 4, v10")
    E("s_lshr_b32 s34, s28, 2")
    E("s_lshl_b32 s34, s34, 7")
    E("s_bfe_u32 s35, s28, 0x10001")
    E("s_lshl_b32 s35, s35, 6")
    E("s_add_u32 s34, s34, s35")
    E("s_and_b32 s35, s28, 1")
    E("s_lshl_b32 s35, s35, 3")
    E("s_add_u32 s34, s34, s35")
    E("v_add_u32 v10, s34, v10")
    E("s_mul_i32 s34, s28, 28672")
    E("s_lshl_b32 s35, s29, 10")
    E("s_add_u32 s34, s34, s35")
    E(f"s_add_u32 s34, s34, {WOF}")
    for b in range(4):
        if b == 3:
            E("s_cmp_ge_u32 s28, 4")
            E("s_cbranch_scc1 K1_END")
        E(f"ds_read_b64_tr_b16 v[{16+4*b}:{17+4*b}], v10 offset:{32768 + 256*b}")
        E(f"ds_read_b64_tr_b16 v[{18+4*b}:{19+4*b}], v10 offset:{32768 + 256*b + 16*896}")
        E(f"s_add_u32 s35, s34, {b*8*28672}")
        E("s_waitcnt lgkmcnt(0)")
        E(f"buffer_store_dwordx4 v[{16+4*b}:{19+4*b}], v7, s[{SWS}:{SWS+3}], s35 offen")
    E.label("K1_END")
    E("s_endpgm")
```

```python
from gen_common import *
import math
VGPR = 256
GRID = 704
LDS = 81920

class VM:
    def __init__(s, E): s.E = E; s.q = []; s.done = 0
    def issue(s, tag): s.q.append(tag)
    def wait(s, tag):
        idx = max(i for i, t in enumerate(s.q) if t == tag)
        if idx < s.done: return
        n = len(s.q) - 1 - idx
        assert n < 64
        s.E(f"s_waitcnt vmcnt({n})"); s.done = idx + 1

def gemm(E):
    SWSP, SWS, SB = 8, 12, 16
    load_srds(E, [("wsp", SWSP), ("ws", SWS), ("bsp", SB)])
    stamp(E, 0)
    E("s_and_b32 s48, s2, 7")
    E("s_lshr_b32 s49, s2, 3")
    E("s_lshr_b32 s29, s48, 1")
    E("s_lshl_b32 s29, s29, 3")
    E("s_and_b32 s50, s49, 7")
    E("s_add_u32 s29, s29, s50")
    E("s_and_b32 s30, s48, 1")
    E("s_lshl_b32 s30, s30, 2")
    E("s_lshr_b32 s50, s49, 3")
    E("s_add_u32 s30, s30, s50")
    E("v_lshrrev_b32 v8, 3, v1")
    E("v_and_b32 v9, 7, v1")
    E("v_lshrrev_b32 v10, 4, v1")
    E("v_xor_b32 v9, v9, v10")
    E("v_lshlrev_b32 v8, 12, v8")
    E("v_lshl_add_u32 v2, v9, 4, v8")
    E("v_xor_b32 v3, 64, v2")
    E("s_lshl_b32 s48, s29, 18")
    E("s_lshl_b32 s49, s28, 10")
    E("s_add_u32 s48, s48, s49")
    E("s_lshl_b32 s49, s28, 1")
    for q in range(8):
        E(f"s_xor_b32 s50, s49, {q}")
        E("s_lshl_b32 s50, s50, 15")
        E(f"s_add_u32 s{32+q}, s48, s50")
    E("s_lshl_b32 s31, s28, 14")
    E("v_lshlrev_b32 v6, 4, v1")
    E("v_add_u32 v7, 4096, v6")
    E("s_lshl_b32 s40, s30, 6")
    E("s_lshl_b32 s49, s28, 4")
    E("s_add_u32 s40, s40, s49")
    E("s_mul_i32 s40, s40, 7168")
    V = VM(E)
    ACC, ZB, WF = 16, 128, 212
    E("s_waitcnt lgkmcnt(0)")
    def wdma(kp, q):
        E(f"s_add_u32 m0, s31, {(kp & 1) * 8192 + q * 1024}")
        E(f"buffer_load_dwordx4 v{2 + (q & 1)}, s[{SWSP}:{SWSP+3}], s{32+q} offen lds")
        V.issue(("W", kp))
        if q == 7:
            E("v_add_u32 v2, 128, v2")
            E("v_add_u32 v3, 128, v3")
    def zbase(ks): E(f"s_add_u32 s41, s40, {ks * 7168}")
    def zld(ks, a):
        r = ZB + 28 * (ks % 3) + 4 * a
        E(f"buffer_load_dwordx4 v[{r}:{r+3}], v{6 + (a >> 2)}, s[{SWS}:{SWS+3}], s41 offen offset:{(a & 3) * 1024}")
        V.issue(("Z", ks, a))
    for q in range(8): wdma(0, q)
    zbase(0)
    for a in range(7): zld(0, a)
    zbase(1)
    for a in range(7): zld(1, a)
    for q in range(8): wdma(1, q)
    zbase(2)
    for a in range(7): zld(2, a)
    E("v_and_b32 v8, 15, v1")
    E("v_bfe_u32 v9, v1, 1, 3")
    E("v_xor_b32 v9, v9, v10")
    E("v_lshlrev_b32 v8, 7, v8")
    E("v_lshl_add_u32 v4, v9, 4, v8")
    E("v_add_u32 v4, s31, v4")
    E("v_xor_b32 v5, 64, v4")
    E("s_lshl_b32 s48, s29, 2")
    E("s_add_u32 s48, s48, s28")
    E("s_lshl_b32 s57, s48, 5")
    E("s_mul_i32 s48, s48, 28672")
    E(f"s_add_u32 s48, s48, {Z1F}")
    E("s_mul_i32 s49, s30, 7")
    for a in range(7):
        E(f"s_add_u32 s42, s49, {a}")
        E("s_lshr_b32 s43, s42, 1")
        E("s_lshl_b32 s43, s43, 10")
        E("s_and_b32 s42, s42, 1")
        E("s_lshl_b32 s42, s42, 3")
        E("s_add_u32 s42, s42, s43")
        E(f"s_add_u32 s{50+a}, s42, s48")
    E("v_add_u32 v11, 0x400000, v6")
    E("v_and_b32 v12, 15, v1")
    E("v_lshlrev_b32 v12, 1, v12")
    def wread(kp, h):
        for b in range(4):
            r = WF + 16 * h + 4 * b
            E(f"ds_read_b128 v[{r}:{r+3}], v{4+h} offset:{(kp & 1) * 8192 + b * 2048}")
    V.wait(("W", 0))
    stamp(E, 1)
    wread(0, 0)
    Z1R = ZB + 28 * 1
    for ks in range(16):
        kp, h = ks >> 1, ks & 1
        E("s_waitcnt lgkmcnt(0)")
        if h == 0: wread(kp, 1)
        if ks + 3 < 16: zbase(ks + 3)
        if ks in (4, 8, 12): stamp(E, 1 + ks // 4)
        for a in range(7):
            V.wait(("Z", ks, a))
            z = ZB + 28 * (ks % 3) + 4 * a
            for b in range(4):
                c = ACC + 16 * a + 4 * b; w = WF + 16 * h + 4 * b
                src = "0" if ks == 0 else f"v[{c}:{c+3}]"
                E(f"v_mfma_f32_16x16x32_bf16 v[{c}:{c+3}], v[{z}:{z+3}], v[{w}:{w+3}], {src}")
            if ks + 3 < 16: zld(ks + 3, a)
            if h == 0 and kp + 2 < 8:
                if a == 1: E("s_waitcnt lgkmcnt(0)")
                if 2 <= a <= 5:
                    wdma(kp + 2, 2 * (a - 2)); wdma(kp + 2, 2 * (a - 2) + 1)
            if h == 1 and a == 3 and kp + 1 < 8:
                V.wait(("W", kp + 1))
                wread(kp + 1, 0)
            if ks == 14:
                E(f"buffer_load_dwordx2 v[{Z1R+2*a}:{Z1R+2*a+1}], v6, s[{SWS}:{SWS+3}], s{50+a} offen")
                V.issue("z1")
                if a == 0:
                    E(f"buffer_load_ushort v13, v12, s[{SB}:{SB+3}], s57 offen")
                    V.issue("z1")
    stamp(E, 5)
    E("v_add_u32 v8, s31, v6")
    E("v_xor_b32 v9, 0x4000, v8")
    E("v_xor_b32 v10, 0xC000, v8")
    for a in range(7):
        for i, b in enumerate((1, 3)):
            c = ACC + 16 * a + 4 * b
            E(f"ds_write_b128 v8, v[{c}:{c+3}] offset:{(2*a+i)*1024}")
    E("s_waitcnt lgkmcnt(0)")
    E("s_barrier")
    T = ZB + 56
    for a in range(7):
        for i in range(2):
            r = T + 4 * (2 * a + i)
            E(f"ds_read_b128 v[{r}:{r+3}], v9 offset:{(2*a+i)*1024}")
    for a in range(7):
        E(f"s_waitcnt lgkmcnt({12 - 2*a})")
        for i, b in enumerate((0, 2)):
            c = ACC + 16 * a + 4 * b; r = T + 4 * (2 * a + i)
            E(f"v_pk_add_f32 v[{c}:{c+1}], v[{c}:{c+1}], v[{r}:{r+1}]")
            E(f"v_pk_add_f32 v[{c+2}:{c+3}], v[{c+2}:{c+3}], v[{r+2}:{r+3}]")
    for a in range(7):
        c = ACC + 16 * a + 8
        E(f"ds_write_b128 v9, v[{c}:{c+3}] offset:{a*1024}")
    E("s_waitcnt lgkmcnt(0)")
    E("s_barrier")
    for a in range(7):
        r = T + 4 * a
        E(f"ds_read_b128 v[{r}:{r+3}], v10 offset:{a*1024}")
    stamp(E, 6)
    V.wait("z1")
    E("v_lshlrev_b32 v13, 16, v13")
    for a in range(7):
        E(f"s_waitcnt lgkmcnt({6 - a})")
        c = ACC + 16 * a; r = T + 4 * a; t = c + 4
        E(f"v_pk_add_f32 v[{c}:{c+1}], v[{c}:{c+1}], v[{r}:{r+1}]")
        E(f"v_pk_add_f32 v[{c+2}:{c+3}], v[{c+2}:{c+3}], v[{r+2}:{r+3}]")
        E(f"v_cvt_pk_bf16_f32 v{t}, v{c}, v{c+1}")
        E(f"v_cvt_pk_bf16_f32 v{t+1}, v{c+2}, v{c+3}")
        E(f"v_lshlrev_b32 v{c}, 16, v{t}")
        E(f"v_and_b32 v{c+1}, 0xffff0000, v{t}")
        E(f"v_lshlrev_b32 v{c+2}, 16, v{t+1}")
        E(f"v_and_b32 v{c+3}, 0xffff0000, v{t+1}")
        for k in range(4): E(f"v_add_f32 v{c+k}, v{c+k}, v13")
        E(f"v_cvt_pk_bf16_f32 v{t}, v{c}, v{c+1}")
        E(f"v_cvt_pk_bf16_f32 v{t+1}, v{c+2}, v{c+3}")
        E(f"v_lshlrev_b32 v{c}, 16, v{t}")
        E(f"v_and_b32 v{c+1}, 0xffff0000, v{t}")
        E(f"v_lshlrev_b32 v{c+2}, 16, v{t+1}")
        E(f"v_and_b32 v{c+3}, 0xffff0000, v{t+1}")
        z = Z1R + 2 * a
        E(f"v_lshlrev_b32 v{t}, 16, v{z}")
        E(f"v_and_b32 v{t+1}, 0xffff0000, v{z}")
        E(f"v_lshlrev_b32 v{t+2}, 16, v{z+1}")
        E(f"v_and_b32 v{t+3}, 0xffff0000, v{z+1}")
        E(f"v_pk_mul_f32 v[{c}:{c+1}], v[{c}:{c+1}], v[{t}:{t+1}]")
        E(f"v_pk_mul_f32 v[{c+2}:{c+3}], v[{c+2}:{c+3}], v[{t+2}:{t+3}]")
        E(f"v_cvt_pk_bf16_f32 v{t+4}, v{c}, v{c+1}")
        E(f"v_cvt_pk_bf16_f32 v{t+5}, v{c+2}, v{c+3}")
        E(f"buffer_store_dwordx2 v[{t+4}:{t+5}], v11, s[{SWS}:{SWS+3}], s{50+a} offen")
    stamp(E, 7)
    stamp_flush(E, 8, SWS, 1)
    E("s_endpgm")

TABW = 57 * 272
URB = 4 * TABW
KPB = URB + 4608 + 16
KXB = 70752
KX1 = 4160
LOG2E = 1.4426950408889634

def conv(E):
    SWS, SLA, SAI, SCR, SCI, SDT, SDS = 12, 20, 24, 32, 36, 40, 44
    load_srds(E, [("ws", SWS), ("lar", SLA), ("aim", SAI), ("cre", SCR), ("cim", SCI), ("ldt", SDT), ("dsk", SDS)])
    stamp(E, 0)
    E("s_sub_u32 s29, s2, 256")
    E("v_lshlrev_b32 v2, 1, v0")
    E("s_lshl_b32 s30, s29, 9")
    E("s_lshl_b32 s31, s29, 1")
    E("v_mov_b32 v3, 0")
    E("v_lshlrev_b32 v4, 4, v1")
    E("s_lshl_b32 s48, s29, 12")
    E("s_lshl_b32 s49, s28, 10")
    E("s_add_u32 s50, s48, s49")
    E(f"s_add_u32 s50, s50, {XNT}")
    E(f"s_add_u32 m0, s49, {URB}")
    E("s_waitcnt lgkmcnt(0)")
    E(f"buffer_load_ushort v9, v3, s[{SDT}:{SDT+3}], s31 offen")
    E(f"buffer_load_ushort v5, v2, s[{SLA}:{SLA+3}], s30 offen")
    E(f"buffer_load_ushort v6, v2, s[{SAI}:{SAI+3}], s30 offen")
    E(f"buffer_load_ushort v7, v2, s[{SCR}:{SCR+3}], s30 offen")
    E(f"buffer_load_ushort v8, v2, s[{SCI}:{SCI+3}], s30 offen")
    E(f"buffer_load_ushort v10, v3, s[{SDS}:{SDS+3}], s31 offen")
    E(f"buffer_load_dwordx4 v4, s[{SWS}:{SWS+3}], s50 offen lds")
    E("v_mov_b32 v12, 0"); E("v_mov_b32 v13, 0")
    E("v_lshlrev_b32 v11, 3, v1")
    E(f"v_add_u32 v14, {URB + 4096}, v11")
    E("ds_write_b64 v14, v[12:13]")
    E("v_and_b32 v11, 24, v11")
    E(f"v_add_u32 v11, {KXB}, v11")
    E("ds_write_b64 v11, v[12:13]")
    E(f"ds_write_b64 v11, v[12:13] offset:{KX1}")
    E(f"v_mov_b32 v11, {KPB - 8}")
    E("ds_write_b64 v11, v[12:13]")
    GA = 16
    E("v_lshlrev_b32 v11, 3, v0")
    for i in range(9):
        E(f"v_add_u32 v{GA+i}, {i-1}, v11")
    for i in range(9): E(f"v_cvt_f32_i32 v{GA+i}, v{GA+i}")
    for i in range(9): bf16r(E, f"v{GA+i}", f"v{GA+i}")
    for i in range(9): E(f"v_cvt_i32_f32 v{GA+i}, v{GA+i}")
    E(f"v_mov_b32 v11, {KPB}")
    for i in range(9): E(f"v_lshl_add_u32 v{GA+i}, v{GA+i}, 1, v11")
    E("v_and_b32 v25, 15, v1")
    E("v_lshrrev_b32 v26, 4, v1")
    def exp_acc(dst, src):
        hi = LOG2E; import struct
        hi32 = struct.unpack("<f", struct.pack("<f", hi))[0]; lo = hi - hi32
        E(f"v_mul_f32 v12, {f32hex(hi32)}, {src}")
        E(f"v_mov_b32 v14, {f32hex(hi32)}")
        E(f"v_fma_f32 v13, {src}, v14, -v12")
        E(f"v_fmac_f32 v13, {f32hex(lo)}, {src}")
        E(f"v_exp_f32 v12, v12")
        E(f"v_mul_f32 v13, {f32hex(math.log(2.0))}, v13")
        E(f"v_fma_f32 {dst}, v12, v13, v12")
    E("s_waitcnt vmcnt(5)")
    E("v_lshlrev_b32 v9, 16, v9")
    E("v_lshlrev_b32 v5, 16, v5")
    exp_acc("v9", "v9"); bf16r(E, "v9", "v9")
    exp_acc("v5", "v5"); bf16r(E, "v5", "v5")
    E("s_waitcnt vmcnt(2)")
    stamp(E, 1)
    for r in (6, 7, 8): E(f"v_lshlrev_b32 v{r}, 16, v{r}")
    E("v_mul_f32 v5, -v5, v9")
    E("v_mul_f32 v6, v6, v9")
    T, F, H, W, G = 32, 48, 80, 116, 128
    E(f"v_mul_f32 v{H}, v7, v9")
    E(f"v_mul_f32 v{H+1}, v8, v9")
    E(f"v_mul_f32 v{H}, 64.0, v{H}" if False else f"v_mul_f32 v{H}, {f32hex(64.0)}, v{H}")
    E(f"v_mul_f32 v{H+1}, {f32hex(64.0)}, v{H+1}")
    for m, dst, t in ((1, T + 2, 27), (8, F + 2, 28), (128, W, 29)):
        E(f"v_mul_f32 v{t}, {f32hex(m * LOG2E)}, v5")
        E(f"v_mul_f32 v{dst+1}, {f32hex(m / (2 * math.pi))}, v6")
        E(f"v_exp_f32 v{t}, v{t}")
        E(f"v_cos_f32 v{dst}, v{dst+1}")
        E(f"v_sin_f32 v{dst+1}, v{dst+1}")
    for m, dst, t in ((1, T + 2, 27), (8, F + 2, 28), (128, W, 29)):
        E(f"v_mul_f32 v{dst}, v{dst}, v{t}")
        E(f"v_mul_f32 v{dst+1}, v{dst+1}, v{t}")
    def cmul_batch(lst):
        for z, x, y in lst: E(f"v_pk_mul_f32 v[{z}:{z+1}], v[{x}:{x+1}], v[{y}:{y+1}] op_sel:[0,0] op_sel_hi:[1,0]")
        for z, x, y in lst: E(f"v_pk_fma_f32 v[{z}:{z+1}], v[{x}:{x+1}], v[{y}:{y+1}], v[{z}:{z+1}] op_sel:[1,1,0] op_sel_hi:[0,1,1] neg_lo:[1,0,0]")
    t = lambda k: T + 2 * k
    f = lambda k: F + 2 * k
    h = lambda k: H + 2 * k
    w = lambda i: W + 2 * i
    E(f"s_mul_i32 s48, s28, {TABW}")
    E("v_lshlrev_b32 v11, 2, v1")
    E("v_add_u32 v11, s48, v11")
    pk = [0]
    def put(row, src, neg):
        r = 12 + (pk[0] & 3); pk[0] += 1
        E(f"v_cvt_pk_f16_f32 v{r}, v{src}, {'-' if neg else ''}v{src+1}")
        E(f"ds_write_b32 v11, v{r} offset:{row * 272}")
    cmul_batch([(t(2), t(1), t(1)), (f(2), f(1), f(1)), (w(1), w(0), w(0)), (h(1), h(0), w(0))])
    E("v_mov_b32 v30, 0x3c00")
    E(f"ds_write_b32 v11, v30 offset:{41 * 272}")
    put(0, h(0), True); put(42, f(1), False)
    cmul_batch([(t(3), t(2), t(1)), (t(4), t(2), t(2)), (f(3), f(2), f(1)), (f(4), f(2), f(2)), (w(2), w(1), w(1)),
                (h(2), h(0), w(1)), (h(3), h(1), w(1))])
    put(8, h(1), True); put(43, f(2), False)
    cmul_batch([(t(4 + k), t(4), t(k)) for k in (1, 2, 3)] + [(f(4 + k), f(4), f(k)) for k in (1, 2, 3, 4)] +
               [(w(3), w(2), w(2))] + [(h(4 + k), h(k), w(2)) for k in range(4)])
    put(16, h(2), True); put(20, h(3), True); put(44, f(3), False); put(45, f(4), False)
    cmul_batch([(f(8 + k), f(8), f(k)) for k in range(1, 8)] + [(h(8 + k), h(k), w(3)) for k in range(8)])
    for k in range(4): put(24 + 2 * k, h(4 + k), True)
    for k in range(5, 9): put(41 + k, f(k), False)
    rows = [(8 * hh + e, h(hh), t(e)) for hh in range(2) for e in range(1, 8)]
    rows += [(16 + 4 * hh + e, h(2 + hh), t(2 * e)) for hh in range(2) for e in range(1, 4)]
    rows += [(24 + 2 * hh + 1, h(4 + hh), t(4)) for hh in range(4)]
    cmul_batch([(h(16), h(8), w(3))] + [(G + 2 * i, x, y) for i, (r, x, y) in enumerate(rows)])
    for k in range(9, 16): put(41 + k, f(k), False)
    for k in range(9): put(32 + k, h(8 + k), True)
    for i, (r, x, y) in enumerate(rows): put(r, G + 2 * i, True)
    stamp(E, 2)
    E("s_lshl_b32 s48, s28, 4")
    E("v_add_u32 v12, s48, v25")
    E("v_mul_u32_u24 v12, 272, v12")
    E("v_lshl_add_u32 v12, v26, 4, v12")
    E("v_mul_u32_u24 v13, 272, v25")
    E("v_lshl_add_u32 v13, v26, 4, v13")
    E(f"v_add_u32 v13, {41 * 272}, v13")
    E("s_waitcnt lgkmcnt(0)")
    E("s_barrier")
    E("s_cmp_eq_u32 s28, 3")
    E("s_cbranch_scc1 K2C_SKIPM")
    FRG = 32
    for half in range(2):
        for k in range(8):
            wq = 8 * half + k; off = (wq >> 2) * TABW + 64 * (wq & 3)
            E(f"ds_read_b128 v[{FRG+8*wq}:{FRG+8*wq+3}], v12 offset:{off}")
            E(f"ds_read_b128 v[{FRG+8*wq+4}:{FRG+8*wq+7}], v13 offset:{off}")
            if half == 0 and k == 6: pass
        E("s_waitcnt lgkmcnt(0)")
        for k in range(8):
            wq = 8 * half + k; c = 160 + 4 * (k & 1)
            src = "0" if wq < 2 else f"v[{c}:{c+3}]"
            E(f"v_mfma_f32_16x16x32_f16 v[{c}:{c+3}], v[{FRG+8*wq}:{FRG+8*wq+3}], v[{FRG+8*wq+4}:{FRG+8*wq+7}], {src}")
    E(f"v_mov_b32 v14, {KPB}")
    E("v_lshl_add_u32 v14, v25, 4, v14")
    E(f"v_mov_b32 v30, {f32hex(2.0 / 64)}")
    E("v_mov_b32 v31, v30")
    E("v_pk_add_f32 v[160:161], v[160:161], v[164:165]")
    E("v_pk_add_f32 v[162:163], v[162:163], v[166:167]")
    E("v_pk_mul_f32 v[160:161], v[160:161], v[30:31]")
    E("v_pk_mul_f32 v[162:163], v[162:163], v[30:31]")
    E("v_cvt_pk_bf16_f32 v164, v160, v161")
    E("v_cvt_pk_bf16_f32 v165, v162, v163")
    E("s_cmp_eq_u32 s28, 1")
    E("s_cbranch_scc1 K2C_M1")
    E("s_cmp_eq_u32 s28, 2")
    E("s_cbranch_scc1 K2C_M2")
    E("v_lshrrev_b32 v12, 1, v26")
    E("v_lshl_add_u32 v14, v12, 8, v14")
    E("v_and_b32 v12, 1, v26")
    E("v_lshl_add_u32 v14, v12, 3, v14")
    E("ds_write_b64 v14, v[164:165]")
    E("s_branch K2C_SKIPM")
    E.label("K2C_M1")
    E("v_lshl_add_u32 v12, v26, 8, v14")
    E("v_lshl_add_u32 v13, v26, 9, v14")
    E("s_mov_b32 exec_hi, 0")
    E("ds_write_b16 v12, v164 offset:512")
    E("ds_write_b16_d16_hi v12, v164 offset:516")
    E("ds_write_b16 v12, v165 offset:520")
    E("ds_write_b16_d16_hi v12, v165 offset:524")
    E("s_mov_b32 exec_hi, -1")
    E("s_mov_b32 exec_lo, 0")
    E("ds_write_b16 v13, v164")
    E("ds_write_b16_d16_hi v13, v164 offset:8")
    E("ds_write_b16 v13, v165 offset:256")
    E("ds_write_b16_d16_hi v13, v165 offset:264")
    E("s_mov_b64 exec, -1")
    E("s_branch K2C_SKIPM")
    E.label("K2C_M2")
    E("v_lshl_add_u32 v12, v26, 10, v14")
    E("s_mov_b32 exec_hi, 1")
    E("ds_write_b16 v12, v164 offset:2048")
    E("s_mov_b32 exec_hi, 0")
    E("ds_write_b16_d16_hi v12, v164 offset:2304")
    E("ds_write_b16 v12, v165 offset:2560")
    E("ds_write_b16_d16_hi v12, v165 offset:2816")
    E("s_mov_b64 exec, -1")
    E.label("K2C_SKIPM")
    E("s_waitcnt lgkmcnt(0)")
    E("s_barrier")
    stamp(E, 3)
    for i in range(9): E(f"ds_read_u16 v{40 + i}, v{GA + i}")
    E("v_lshlrev_b32 v11, 4, v0")
    E(f"v_add_u32 v11, {KXB + 32}, v11")
    E("s_lshl_b32 s48, s28, 7")
    E("v_lshl_add_u32 v12, v26, 3, v25")
    E("v_lshlrev_b32 v12, 1, v12")
    E("v_and_b32 v14, 1, v25")
    E("v_xor_b32 v14, 1, v14")
    E(f"v_mul_u32_u24 v14, {KX1 + 2}, v14")
    E(f"s_add_u32 s49, s48, {KXB + 2}")
    E("v_add3_u32 v12, v12, v14, s49")
    E("v_lshlrev_b32 v13, 4, v26")
    E("v_lshlrev_b32 v14, 5, v25")
    E("v_sub_u32 v13, v13, v14")
    E(f"s_add_u32 s49, s48, {URB + 4064 - 3584}")
    E("v_add_u32 v13, s49, v13")
    E("s_waitcnt lgkmcnt(0)")
    for i in range(4):
        E(f"v_lshl_or_b32 v{32+i}, v{42+2*i}, 16, v{41+2*i}")
        E(f"v_lshl_or_b32 v{36+i}, v{41+2*i}, 16, v{40+2*i}")
    E("ds_write_b128 v11, v[32:35]")
    E(f"ds_write_b128 v11, v[36:39] offset:{KX1}")
    E("s_waitcnt vmcnt(0) lgkmcnt(0)")
    E("s_barrier")
    stamp(E, 4)
    AF, BF, AC = 32, 96, 160
    def rd(rho, k):
        for i in range(4): E(f"ds_read_b32 v{AF+32*rho+4*k+i}, v12 offset:{512*k + 64*rho + 4*i}")
        E(f"ds_read_b128 v[{BF+32*rho+4*k}:{BF+32*rho+4*k+3}], v13 offset:{512*(7-k) + 64*rho}")
    def mm(rho, q, p, first):
        c = AC + 4 * (q + p); a = AF + 32 * rho + 4 * q; b = BF + 32 * rho + 4 * p
        E(f"v_mfma_f32_16x16x32_bf16 v[{c}:{c+3}], v[{a}:{a+3}], v[{b}:{b+3}], {'0' if first else f'v[{c}:{c+3}]'}")
    seen = set()
    def stage(rho, k):
        prs = [(q, p) for q in range(k + 1) for p in range(k + 1) if max(q, p) == k and q + p <= 7]
        prs.sort(key=lambda x: (x[0] + x[1] + (8 if x[0] < x[1] else 0)))
        for q, p in prs:
            mm(rho, q, p, (q + p) not in seen); seen.add(q + p)
    seq = [(rho, k) for rho in range(2) for k in range(8)]
    rd(*seq[0]); rd(*seq[1]); rd(*seq[2])
    for i, (rho, k) in enumerate(seq):
        rem = min(2, len(seq) - 1 - i)
        E(f"s_waitcnt lgkmcnt({5 * rem})")
        if i + 3 < len(seq): rd(*seq[i + 3])
        stage(rho, k)
    stamp(E, 5)
    E("s_lshl_b32 s48, s28, 13")
    E("v_add_u32 v11, s48, v4")
    for o in range(8): E(f"ds_write_b128 v11, v[{AC+4*o}:{AC+4*o+3}] offset:{o*1024}")
    E("s_lshl_b32 s48, s28, 11")
    E("v_add_u32 v11, s48, v4")
    E("v_lshlrev_b32 v12, 3, v26")
    E("v_lshl_add_u32 v12, v25, 5, v12")
    E("s_lshl_b32 s48, s28, 10")
    E(f"s_sub_u32 s49, {URB + 4088 - 512}, s48")
    E("v_sub_u32 v13, s49, v12")
    E("s_lshl_b32 s49, s29, 12")
    E("s_add_u32 s49, s49, s48")
    E(f"s_add_u32 s49, s49, {YT}")
    E("v_lshlrev_b32 v10, 16, v10")
    E("s_waitcnt lgkmcnt(0)")
    E("s_barrier")
    for e in range(2):
        for ww in range(4):
            r = 32 + 16 * e + 4 * ww
            E(f"ds_read_b128 v[{r}:{r+3}], v11 offset:{ww*8192 + e*1024}")
        E(f"ds_read_b64 v[{64+2*e}:{65+2*e}], v13 offset:{512*(1-e)}")
    for e in range(2):
        E(f"s_waitcnt lgkmcnt({5*(1-e)})")
        r = 32 + 16 * e; u = 64 + 2 * e; s = 72 + 8 * e
        for k in (0, 2):
            E(f"v_pk_add_f32 v[{r+k}:{r+k+1}], v[{r+k}:{r+k+1}], v[{r+4+k}:{r+5+k}]")
            E(f"v_pk_add_f32 v[{r+8+k}:{r+9+k}], v[{r+8+k}:{r+9+k}], v[{r+12+k}:{r+13+k}]")
        for k in (0, 2):
            E(f"v_pk_add_f32 v[{r+k}:{r+k+1}], v[{r+k}:{r+k+1}], v[{r+8+k}:{r+9+k}]")
        E(f"v_and_b32 v{s}, 0xffff0000, v{u+1}")
        E(f"v_lshlrev_b32 v{s+1}, 16, v{u+1}")
        E(f"v_and_b32 v{s+2}, 0xffff0000, v{u}")
        E(f"v_lshlrev_b32 v{s+3}, 16, v{u}")
        for k in range(4): E(f"v_mul_f32 v{s+k}, v{s+k}, v10")
        for x in (r, s):
            E(f"v_cvt_pk_bf16_f32 v{s+4}, v{x}, v{x+1}")
            E(f"v_cvt_pk_bf16_f32 v{s+5}, v{x+2}, v{x+3}")
            E(f"v_lshlrev_b32 v{x}, 16, v{s+4}")
            E(f"v_and_b32 v{x+1}, 0xffff0000, v{s+4}")
            E(f"v_lshlrev_b32 v{x+2}, 16, v{s+5}")
            E(f"v_and_b32 v{x+3}, 0xffff0000, v{s+5}")
        E(f"v_pk_add_f32 v[{r}:{r+1}], v[{r}:{r+1}], v[{s}:{s+1}]")
        E(f"v_pk_add_f32 v[{r+2}:{r+3}], v[{r+2}:{r+3}], v[{s+2}:{s+3}]")
        E(f"v_cvt_pk_bf16_f32 v{s+6}, v{r}, v{r+1}")
        E(f"v_cvt_pk_bf16_f32 v{s+7}, v{r+2}, v{r+3}")
        E(f"buffer_store_dwordx2 v[{s+6}:{s+7}], v12, s[{SWS}:{SWS+3}], s49 offen offset:{512*e}")
    stamp(E, 6); stamp(E, 7)
    stamp_flush(E, 8, SWS, 1)
    E("s_endpgm")

def gen_k2(E):
    prologue(E, "k2_kernel")
    E(f"s_cmp_ge_u32 s2, {GRID}")
    E("s_cbranch_scc1 K2_END")
    E("v_and_b32 v1, 63, v0")
    E("v_lshrrev_b32 v2, 6, v0")
    E("v_readfirstlane_b32 s28, v2")
    E("s_cmp_ge_u32 s2, 256")
    E("s_cbranch_scc1 K2_CONV")
    gemm(E)
    E.label("K2_CONV")
    conv(E)
    E.label("K2_END")
    E("s_endpgm")
```

```python
from gen_common import *
VGPR = 320
ACCUM = 256
GRID = 224
LDS = 57344

def gen_k3(E):
    prologue(E, "k3_kernel")
    E(f"s_cmp_ge_u32 s2, {GRID}")
    E("s_cbranch_scc1 K3_END")
    SX, SWS, SO = 8, 12, 16
    load_srds(E, [("u", SX), ("ws", SWS), ("out", SO)])
    E("v_and_b32 v1, 63, v0")
    E("v_lshrrev_b32 v2, 6, v0")
    E("v_readfirstlane_b32 s28, v2")
    stamp(E, 0)
    E("s_and_b32 s48, s2, 7")
    E("s_lshr_b32 s49, s2, 3")
    E("s_lshl_b32 s29, s48, 2")
    E("s_and_b32 s50, s49, 3")
    E("s_add_u32 s29, s29, s50")
    E("s_lshr_b32 s30, s49, 2")
    E("v_lshlrev_b32 v2, 4, v1")
    E("v_add_u32 v3, 4096, v2")
    E("s_mul_i32 s48, s28, 7168")
    E("s_mul_i32 s49, s30, 114688")
    E("s_add_u32 s49, s49, s48")
    for aa in range(4): E(f"s_add_u32 s{32+aa}, s49, {WOF + aa*28672}")
    E("s_lshl_b32 s49, s29, 2")
    for b in range(4):
        E(f"s_xor_b32 s50, s28, {b}")
        E("s_add_u32 s50, s50, s49")
        E("s_mul_i32 s50, s50, 28672")
        E("s_add_u32 s50, s50, s48")
        E(f"s_add_u32 s{36+b}, s50, {HF}")
    E("s_waitcnt lgkmcnt(0)")
    FR = 32
    for k in range(7):
        for i in range(8):
            j = (i >> 1) + 4 * (i & 1)
            r = FR + 32 * k + 4 * j
            E(f"buffer_load_dwordx4 v[{r}:{r+3}], v{2 + (k >> 2)}, s[{SWS}:{SWS+3}], s{32+j} offen offset:{(k & 3) * 1024}")
    E("v_lshrrev_b32 v4, 3, v1")
    E("v_lshlrev_b32 v4, 12, v4")
    E("v_and_b32 v5, 7, v1")
    E("v_lshl_add_u32 v4, v5, 4, v4")
    E("s_lshl_b32 s48, s30, 2")
    E("s_add_u32 s48, s48, s28")
    E("s_lshl_b32 s48, s48, 16")
    E("s_lshl_b32 s49, s29, 7")
    E("s_add_u32 s48, s48, s49")
    E(f"s_add_u32 s48, s48, {YT}")
    E("s_add_u32 s49, s48, 32768")
    E("s_lshl_b32 s50, s28, 11")
    E("s_add_u32 m0, s50, 49152")
    E(f"buffer_load_dwordx4 v4, s[{SWS}:{SWS+3}], s48 offen lds")
    E("s_add_u32 m0, s50, 50176")
    E(f"buffer_load_dwordx4 v4, s[{SWS}:{SWS+3}], s49 offen lds")
    E("v_and_b32 v5, 15, v1")
    E("v_lshrrev_b32 v6, 4, v1")
    E("v_mul_u32_u24 v7, 896, v5")
    E("v_lshl_add_u32 v7, v6, 4, v7")
    E("s_lshl_b32 s48, s29, 2")
    E("s_add_u32 s48, s48, s28")
    E("s_mul_i32 s48, s48, 14336")
    E("s_lshl_b32 s49, s30, 7")
    E("s_add_u32 s40, s48, s49")
    E(f"buffer_load_dwordx4 v[16:19], v7, s[{SX}:{SX+3}], s40 offen")
    E(f"buffer_load_dwordx4 v[20:23], v7, s[{SX}:{SX+3}], s40 offen offset:64")
    E("s_mul_i32 s48, s28, 12288")
    E("v_add_u32 v8, s48, v2")
    for k in range(1, 4):
        E(f"s_xor_b32 s49, s28, {k}")
        E("s_mul_i32 s49, s49, 12288")
        E(f"v_add_u32 v{8+k}, s49, v2")
    E("v_bfe_u32 v12, v1, 2, 2")
    E("v_lshl_add_u32 v12, v6, 3, v12")
    E("v_lshlrev_b32 v12, 7, v12")
    E("v_and_b32 v13, 3, v1")
    E("v_lshl_add_u32 v12, v13, 3, v12")
    E("s_lshl_b32 s49, s28, 5")
    E("v_add_u32 v12, s49, v12")
    for k in range(7):
        for st in range(4):
            n = 60 - (8 * k + 2 * st + 2)
            E(f"s_waitcnt vmcnt({n})")
            if k == 0 and st == 0: stamp(E, 1)
            for aa in range(st + 1):
                for b in range(st + 1):
                    if max(aa, b) != st: continue
                    c = 16 * b + 4 * aa; a = FR + 32 * k + 4 * aa; bb = FR + 32 * k + 16 + 4 * b
                    E(f"v_mfma_f32_16x16x32_bf16 a[{c}:{c+3}], v[{a}:{a+3}], v[{bb}:{bb+3}], {'0' if k == 0 else f'a[{c}:{c+3}]'}")
    stamp(E, 2)
    for b in range(1, 4):
        for aa in range(4):
            c = 16 * b + 4 * aa
            E(f"ds_write_b128 v8, a[{c}:{c+3}] offset:{((b-1)*4+aa)*1024}")
    for i in range(16): E(f"v_accvgpr_read_b32 v{32+i}, a{i}")
    E("s_waitcnt vmcnt(0) lgkmcnt(0)")
    E("s_barrier")
    stamp(E, 3)
    for hh in range(2):
        for h2 in range(2):
            E(f"ds_read_b64_tr_b16 v[{24+4*hh+2*h2}:{25+4*hh+2*h2}], v12 offset:{49152 + (32*hh+4*h2)*128}")
    for aa in range(4):
        for k in range(1, 4):
            r = 48 + 16 * (k - 1) + 4 * aa
            E(f"ds_read_b128 v[{r}:{r+3}], v{8+k} offset:{((k-1)*4+aa)*1024}")
    E("s_waitcnt lgkmcnt(12)")
    for i in range(8):
        E(f"v_lshlrev_b32 v{96+2*i}, 16, v{16+i}")
        E(f"v_and_b32 v{97+2*i}, 0xffff0000, v{16+i}")
        E(f"v_lshlrev_b32 v{112+2*i}, 16, v{24+i}")
        E(f"v_and_b32 v{113+2*i}, 0xffff0000, v{24+i}")
    for i in range(8): E(f"v_pk_add_f32 v[{96+2*i}:{97+2*i}], v[{96+2*i}:{97+2*i}], v[{112+2*i}:{113+2*i}]")
    for i in range(8): E(f"v_cvt_pk_bf16_f32 v{16+i}, v{96+2*i}, v{97+2*i}")
    for i in range(8):
        E(f"v_lshlrev_b32 v{96+2*i}, 16, v{16+i}")
        E(f"v_and_b32 v{97+2*i}, 0xffff0000, v{16+i}")
    for aa in range(4):
        E(f"s_waitcnt lgkmcnt({9 - 3*aa})")
        for p in (0, 2):
            c = 32 + 4 * aa + p
            E(f"v_pk_add_f32 v[{c}:{c+1}], v[{c}:{c+1}], v[{c+16}:{c+17}]")
            E(f"v_pk_add_f32 v[{c+32}:{c+33}], v[{c+32}:{c+33}], v[{c+48}:{c+49}]")
        for p in (0, 2):
            c = 32 + 4 * aa + p
            E(f"v_pk_add_f32 v[{c}:{c+1}], v[{c}:{c+1}], v[{c+32}:{c+33}]")
        for p in (0, 2):
            c = 32 + 4 * aa + p
            E(f"v_cvt_pk_bf16_f32 v{c+16}, v{c}, v{c+1}")
            E(f"v_lshlrev_b32 v{c}, 16, v{c+16}")
            E(f"v_and_b32 v{c+1}, 0xffff0000, v{c+16}")
            E(f"v_pk_add_f32 v[{c}:{c+1}], v[{c}:{c+1}], v[{c+64}:{c+65}]")
            E(f"v_cvt_pk_bf16_f32 v{128 + 2*aa + p//2}, v{c}, v{c+1}")
        if aa & 1:
            E(f"buffer_store_dwordx4 v[{128 + 4*(aa>>1)}:{131 + 4*(aa>>1)}], v7, s[{SO}:{SO+3}], s40 offen offset:{64*(aa>>1)}")
    stamp(E, 4)
    stamp_flush(E, 5, SWS, 2)
    E.label("K3_END")
    E("s_endpgm")
```

```python
import sys
from gen_common import *
import gen_k1
HEADER = open("parallel_sum__ssm_conv_s4d__mixer_gmlp__prompt.s.ref").read().split("; Override launch")[0]
def build(which=("k1", "k2", "k3")):
    launches = []; body = ""; desc = ""
    if "k1" in which:
        E = Asm(); gen_k1.gen_k1(E); body += E.finish(); desc += kernel_desc("k1_kernel", 168)
        launches.append("; @launch kernel=k1_kernel grid=(256,1,1) block=(512,1,1) lds=131328")
    if "k2" in which:
        import gen_k2
        E = Asm(); gen_k2.gen_k2(E); body += E.finish(); desc += kernel_desc("k2_kernel", gen_k2.VGPR)
        launches.append(f"; @launch kernel=k2_kernel grid=({gen_k2.GRID},1,1) block=(256,1,1) lds={gen_k2.LDS}")
    if "k3" in which:
        import gen_k3
        E = Asm(); gen_k3.gen_k3(E); body += E.finish(); desc += kernel_desc("k3_kernel", gen_k3.VGPR, accum=gen_k3.ACCUM)
        launches.append(f"; @launch kernel=k3_kernel grid=({gen_k3.GRID},1,1) block=(256,1,1) lds={gen_k3.LDS}")
    return HEADER + "\n".join(launches) + '\n.amdgcn_target "amdgcn-amd-amdhsa--gfx950"\n.text\n' + body + desc
if __name__ == "__main__":
    out = sys.argv[1]; which = sys.argv[2].split(",") if len(sys.argv) > 2 else ("k1", "k2", "k3")
    open(out, "w").write(build(which))
```

```python
from gen_common import *
from gen_k2 import VM, kgen, TABW
VGPR = 256
LDS = 163840
SL = 24576
W1B = 98304
SCR = 155648
PAIR = 32768
CSA = 159744

def gen_k1(E):
    prologue(E, "k1_kernel")
    SX, SW, SWS, SDB, SWO = 8, 12, 16, 20, 24
    E("s_cmp_ge_u32 s2, 256")
    E("s_cbranch_scc1 K1_END")
    load_srds(E, [("u", SX), ("win", SW), ("ws", SWS), ("dbg", SDB), ("wout", SWO), ("wsp", 4)])
    E("v_and_b32 v1, 63, v0")
    E("v_lshrrev_b32 v2, 6, v0")
    E("v_readfirstlane_b32 s28, v2")
    stamp(E, 0)
    E("s_cmp_ge_u32 s2, 224")
    E("s_cbranch_scc1 K1_AUX")
    E("s_and_b32 s33, s2, 7")
    E("s_lshr_b32 s34, s2, 3")
    E("s_lshr_b32 s29, s33, 1")
    E("s_lshl_b32 s29, s29, 2")
    E("s_and_b32 s35, s34, 3")
    E("s_add_u32 s29, s29, s35")
    E("s_and_b32 s30, s33, 1")
    E("s_mul_i32 s30, s30, 7")
    E("s_lshr_b32 s35, s34, 2")
    E("s_add_u32 s30, s30, s35")
    E("s_and_b32 s31, s28, 3")
    E("s_lshr_b32 s32, s28, 2")
    E("v_lshrrev_b32 v6, 3, v1")
    E("v_and_b32 v7, 7, v1")
    E("v_lshrrev_b32 v8, 1, v6")
    E("v_xor_b32 v9, v7, v8")
    E("v_xor_b32 v10, 4, v9")
    E("s_lshl_b32 s33, s29, 7")
    E("s_lshl_b32 s34, s28, 4")
    E("s_add_u32 s34, s34, s33")
    E("v_add_u32 v11, s34, v6")
    E("v_mul_u32_u24 v11, 896, v11")
    E("v_lshl_add_u32 v3, v9, 4, v11")
    E("v_lshl_add_u32 v4, v10, 4, v11")
    E("v_add_u32 v4, 7168, v4")
    E("v_and_b32 v9, 1, v8")
    E("v_lshlrev_b32 v9, 2, v9")
    E("v_xor_b32 v9, v7, v9")
    E("s_lshl_b32 s34, s28, 3")
    E("v_add_u32 v11, s34, v6")
    E("v_mul_u32_u24 v11, 3584, v11")
    E("v_lshl_add_u32 v5, v9, 4, v11")
    E("s_lshl_b32 s34, s30, 7")
    E("v_add_u32 v5, s34, v5")
    E("s_lshl_b32 s36, s28, 11")
    E("s_lshl_b32 s37, s28, 10")
    E("s_waitcnt lgkmcnt(0)")
    V = VM(E)
    E("v_mov_b32 v30, 0")
    E("s_lshl_b32 s49, s29, 7")
    E(f"s_add_u32 s49, s49, {TAGW}")
    E(f"buffer_load_dword v31, v30, s[{SWS}:{SWS+3}], s49 offen")
    def issue(c, parts=(0, 1, 2)):
        slot = (c % 4) * SL
        if 0 in parts:
            E(f"s_add_u32 m0, s36, {slot}")
            E(f"s_mov_b32 s40, {c*128}")
            E(f"buffer_load_dwordx4 v3, s[{SX}:{SX+3}], s40 offen lds")
        if 1 in parts:
            E(f"s_add_u32 m0, s36, {slot+1024}")
            E(f"s_mov_b32 s41, {c*229376+1792}")
            E(f"buffer_load_dwordx4 v4, s[{SX}:{SX+3}], s40 offen lds")
        if 2 in parts:
            E(f"s_add_u32 m0, s37, {slot+16384}")
            E("s_nop 0")
            E(f"buffer_load_dwordx4 v5, s[{SW}:{SW+3}], s41 offen lds")
        for _ in parts: V.issue(("S", c))
    def issue_w1(c):
        E(f"s_add_u32 m0, s37, {W1B + c*8192}")
        E(f"s_mov_b32 s42, {c*229376}")
        E(f"buffer_load_dwordx4 v5, s[{SW}:{SW+3}], s42 offen lds")
        V.issue("W1")
    for c in range(4): issue(c)
    E("v_and_b32 v6, 31, v1")
    E("v_lshrrev_b32 v7, 5, v1")
    E("v_bfe_u32 v8, v6, 1, 3")
    E("v_xor_b32 v8, v8, v7")
    E("s_lshl_b32 s34, s31, 5")
    E("v_add_u32 v9, s34, v6")
    E("v_lshlrev_b32 v9, 7, v9")
    E("v_lshl_add_u32 v12, v8, 4, v9")
    E("s_lshl_b32 s45, s32, 1")
    E("s_xor_b32 s45, s45, s31")
    E("s_lshl_b32 s34, s45, 5")
    E("v_xor_b32 v12, s34, v12")
    for j in range(1, 4): E(f"v_xor_b32 v{12+j}, {32*j}, v12")
    for j in range(4): E(f"v_add_u32 v{16+j}, {2*SL}, v{12+j}")
    E("v_bfe_u32 v8, v1, 2, 2")
    E("v_lshl_add_u32 v9, v7, 3, v8")
    E("v_lshlrev_b32 v9, 7, v9")
    E("v_bfe_u32 v10, v1, 4, 1")
    E("v_lshlrev_b32 v10, 1, v10")
    E("v_bfe_u32 v11, v1, 1, 1")
    E("v_add_u32 v10, v10, v11")
    E("s_lshl_b32 s34, s32, 2")
    E("v_add_u32 v10, s34, v10")
    E("v_lshrrev_b32 v8, 1, v8")
    E("v_lshlrev_b32 v8, 2, v8")
    E("v_xor_b32 v10, v10, v8")
    E("v_lshl_add_u32 v9, v10, 4, v9")
    E("v_and_b32 v11, 1, v1")
    E("v_lshl_add_u32 v20, v11, 3, v9")
    E(f"v_add_u32 v25, {W1B}, v20")
    E("v_add_u32 v20, 16384, v20")
    E(f"v_add_u32 v21, {2*SL}, v20")
    E("s_lshl_b32 s43, s31, 1")
    E("s_add_u32 s43, s43, s32")
    E("v_bfe_u32 v8, v1, 2, 2")
    E("v_bfe_u32 v10, v1, 4, 1")
    E("v_lshl_add_u32 v8, v10, 3, v8")
    E("s_and_b32 s34, s30, 1")
    E("s_lshl_b32 s34, s34, 2")
    E("v_lshrrev_b32 v10, 5, v1")
    E("v_lshlrev_b32 v10, 1, v10")
    E("v_bfe_u32 v11, v1, 1, 1")
    E("v_add3_u32 v10, v10, v11, s34")
    E("v_lshrrev_b32 v11, 1, v8")
    E("v_xor_b32 v10, v10, v11")
    E("v_lshlrev_b32 v8, 7, v8")
    E("v_lshl_add_u32 v8, v10, 4, v8")
    E("v_and_b32 v11, 1, v1")
    E("v_lshl_add_u32 v8, v11, 3, v8")
    E("s_lshr_b32 s38, s30, 1")
    E("s_and_b32 s34, s38, 3")
    E(f"s_mul_i32 s34, s34, {SL}")
    E("s_lshl_b32 s35, s43, 11")
    E("s_add_u32 s34, s34, s35")
    E("v_xor_b32 v23, 32, v8")
    E("v_add_u32 v22, s34, v8")
    E("v_add_u32 v23, s34, v23")
    E("v_add_u32 v23, 512, v23")
    E("v_lshlrev_b32 v24, 4, v1")
    E("v_mov_b32 v30, 0")
    E("s_mov_b32 s44, 0x3f803f80")
    ACC2, ACC1, XF, WFR = 32, 48, 64, 176
    SSUM, SSQ, SC2, SC1 = 208, 212, 216, 220
    XG = 26
    for r in range(208, 224): E(f"v_mov_b32 v{r}, 0")
    E("v_lshrrev_b32 v6, 2, v1")
    E("v_lshrrev_b32 v7, 4, v1")
    E("v_xor_b32 v6, v6, v7")
    E("v_and_b32 v6, 1, v6")
    E("v_add_u32 v6, -1, v6")
    for r in range(232, 236): E(f"v_and_b32 v{r}, s44, v6")
    E(f"v_mov_b32 v242, {f32hex(GELU_K1)}")
    E(f"v_mov_b32 v243, {f32hex(GELU_K2)}")
    E("v_mov_b32 v244, 1.0")
    E("v_mov_b32 v245, 1.0")
    E("s_lshl_b32 s34, s28, 9")
    E(f"s_add_u32 s34, s34, {SCR}")
    E("v_and_b32 v6, 31, v1")
    E("v_lshl_add_u32 v246, v6, 3, s34")
    E("v_bfe_u32 v7, v1, 4, 1")
    E("s_lshl_b32 s35, s32, 7")
    E("s_add_u32 s34, s34, s35")
    E("v_lshl_add_u32 v249, v7, 6, s34")
    E("s_lshl_b32 s34, s31, 8")
    E(f"s_add_u32 s34, s34, {PAIR}")
    E("v_lshl_add_u32 v250, v6, 3, s34")
    E("s_lshl_b32 s34, s32, 9")
    E(f"s_add_u32 s34, s34, {CSA}")
    E("v_and_b32 v6, 31, v1")
    E("v_lshl_add_u32 v255, v6, 4, s34")
    E("s_lshl_b32 s35, s31, 2")
    E("v_add_u32 v254, s35, v255")
    E("s_lshl_b32 s34, s31, 9")
    E(f"s_add_u32 s34, s34, {CSA + 2048}")
    E("v_lshl_add_u32 v247, v6, 4, s34")
    E("s_lshl_b32 s35, s32, 3")
    E("v_add_u32 v251, s35, v247")
    E("s_lshl_b32 s34, s28, 9")
    E(f"s_add_u32 s34, s34, {SCR + 256}")
    E("v_lshl_add_u32 v252, v6, 2, s34")
    E("v_lshrrev_b32 v7, 5, v1")
    E("v_lshl_add_u32 v253, v7, 4, s34")
    for j in range(4):
        E(f"s_xor_b32 s34, s45, {j}")
        E("s_lshl_b32 s34, s34, 11")
        E(f"v_add_u32 v{6+j}, s34, v20")
        E(f"v_add_u32 v{236+j}, s34, v21")
    def reads(c):
        slot = c % 4; hi = slot >= 2; so = (slot & 1) * SL
        for j in range(4):
            a = (16 if hi else 12) + j; b = (236 if hi else 6) + j; x = XF + 16 * c + 4 * j; f = WFR + 16 * (c & 1) + 4 * j
            E(f"ds_read_b128 v[{x}:{x+3}], v{a} offset:{so}")
            for h in range(2):
                E(f"ds_read_b64_tr_b16 v[{f+2*h}:{f+1+2*h}], v{b} offset:{so + h*512}")
    def mm(c, j):
        x = XF + 16 * c + 4 * j; f = WFR + 16 * (c & 1) + 4 * j
        c2 = "0" if (c == 0 and j == 0) else f"v[{ACC2}:{ACC2+15}]"
        E(f"v_mfma_f32_32x32x16_bf16 v[{ACC2}:{ACC2+15}], v[{f}:{f+3}], v[{x}:{x+3}], {c2}")
        xs = XF + 16 * c + 4 * (j >> 1) + 2 * (j & 1)
        for k in range(2):
            E(f"v_lshlrev_b32 v{224+2*k}, 16, v{xs+k}")
            E(f"v_and_b32 v{225+2*k}, 0xffff0000, v{xs+k}")
        if j < 2: E(f"v_mfma_f32_16x16x32_bf16 v[{SSUM}:{SSUM+3}], v[232:235], v[{x}:{x+3}], v[{SSUM}:{SSUM+3}]")
        if j == 2:
            f0 = WFR + 16 * (c & 1)
            E(f"v_mfma_f32_16x16x32_bf16 v[{SC2}:{SC2+3}], v[232:235], v[{f0}:{f0+3}], v[{SC2}:{SC2+3}]")
        for k in range(4): E(f"v_fmac_f32 v{SSQ+k}, v{224+k}, v{224+k}")
    w1n = [0]
    for i in range(8):
        if i < 7:
            V.wait(("S", i))
            E("s_waitcnt lgkmcnt(0)")
            E("s_barrier")
            if i in (0, 3, 6): stamp(E, {0: 1, 3: 2, 6: 3}[i])
            E(f"s_cmp_lg_u32 s38, {i}")
            E(f"s_cbranch_scc1 K1_NOGRAB{i}")
            E(f"ds_read_b64_tr_b16 v[{XG}:{XG+1}], v22")
            E(f"ds_read_b64_tr_b16 v[{XG+2}:{XG+3}], v23")
            E.label(f"K1_NOGRAB{i}")
            reads(i)
        else:
            E("s_waitcnt lgkmcnt(0)")
        if i == 0: continue
        for j in range(4):
            mm(i - 1, j)
            if i <= 3 and j < 3: issue(i + 3, (j,))
            if i in (4, 5) and w1n[0] < 7: issue_w1(w1n[0]); w1n[0] += 1
            if i == 5 and j == 3:
                E("s_lshl_b32 s34, s2, 3")
                E("s_add_u32 s34, s34, s28")
                E("s_mul_i32 s34, s34, 4736")
                E("v_min_u32 v4, 36, v1")
                E("v_lshlrev_b32 v4, 7, v4")
                E("buffer_load_dword v4, v4, s[4:7], s34 offen")
                V.issue("pf")
    stamp(E, 4)
    def red4(r):
        E(f"v_add_f32 v{r}, v{r}, v{r+1}")
        E(f"v_add_f32 v{r+2}, v{r+2}, v{r+3}")
        E(f"v_add_f32 v{r}, v{r}, v{r+2}")
        E(f"v_mov_b32 v{r+1}, v{r}")
        E(f"v_permlane32_swap_b32 v{r}, v{r+1}")
        E(f"v_add_f32 v{r}, v{r}, v{r+1}")
    red4(SSQ)
    E(f"v_mov_b32 v{SSUM+1}, v{SSQ}")
    E(f"ds_write_b64 v251, v[{SSUM}:{SSUM+1}]")
    E(f"ds_write_b32 v254, v{SC2} offset:1024")
    for j in range(4): E(f"v_add_u32 v{6+j}, {W1B - 16384}, v{6+j}")
    E("s_waitcnt lgkmcnt(0)")
    E("s_barrier")
    CS, T = 176, 192
    E("ds_read_b128 v[224:227], v255 offset:1024")
    E("ds_read_b128 v[228:231], v247")
    E("s_waitcnt lgkmcnt(1)")
    E("v_add_f32 v224, v224, v225")
    E("v_add_f32 v226, v226, v227")
    E("v_add_f32 v224, v224, v226")
    E("ds_write_b32 v252, v224")
    for o in range(4): E(f"ds_read_b128 v[{CS+4*o}:{CS+4*o+3}], v253 offset:{32*o}")
    E("s_waitcnt lgkmcnt(5)")
    E("v_add_f32 v240, v228, v230")
    E("v_add_f32 v241, v229, v231")
    def ln_stats(m, q, n):
        E(f"v_mul_f32 v{m}, {f32hex(1.0/n)}, v{m}")
        E(f"v_mul_f32 v{q}, {f32hex(1.0/n)}, v{q}")
        E(f"v_fma_f32 v{q}, -v{m}, v{m}, v{q}")
        E(f"v_max_f32 v{q}, 0, v{q}")
        bf16r(E, f"v{m}", f"v{m}"); bf16r(E, f"v{q}", f"v{q}")
        E(f"v_add_f32 v{q}, {f32hex(1e-5)}, v{q}")
        bf16r(E, f"v{q}", f"v{q}")
        E(f"v_sqrt_f32 v{q}, v{q}")
        bf16r(E, f"v{q}", f"v{q}")
        E(f"v_rcp_f32 v{q}, v{q}")
    ln_stats(240, 241, 448)
    E("ds_write_b64 v246, v[240:241]")
    def gelu_block(acc, CS=176):
        P = lambda r: f"v[{r}:{r+1}]"
        idx = range(0, 16, 2)
        for i in idx: E(f"v_pk_fma_f32 {P(acc+i)}, {P(CS+i)}, v[240:241], {P(acc+i)} op_sel:[0,0,0] op_sel_hi:[1,0,1] neg_lo:[1,0,0] neg_hi:[1,0,0]")
        for i in idx: E(f"v_pk_mul_f32 {P(acc+i)}, {P(acc+i)}, v[240:241] op_sel:[0,1] op_sel_hi:[1,1]")
        for i in idx: E(f"v_pk_mul_f32 {P(T+i)}, {P(acc+i)}, {P(acc+i)}")
        for i in idx: E(f"v_pk_fma_f32 {P(T+i)}, {P(T+i)}, v[242:243], v[242:243] op_sel:[0,1,0] op_sel_hi:[1,1,0]")
        for i in idx: E(f"v_pk_mul_f32 {P(T+i)}, {P(T+i)}, {P(acc+i)}")
        for i in range(16): E(f"v_exp_f32 v{T+i}, v{T+i}")
        for i in idx: E(f"v_pk_add_f32 {P(T+i)}, {P(T+i)}, v[244:245]")
        for i in range(16): E(f"v_rcp_f32 v{T+i}, v{T+i}")
        for i in idx: E(f"v_pk_mul_f32 {P(acc+i)}, {P(acc+i)}, {P(T+i)}")
    E("s_waitcnt lgkmcnt(1)")
    gelu_block(ACC2)
    E(f"v_pk_add_f32 v[224:225], v[{ACC2}:{ACC2+1}], v[{ACC2+2}:{ACC2+3}]")
    E(f"v_pk_mul_f32 v[226:227], v[{ACC2}:{ACC2+1}], v[{ACC2}:{ACC2+1}]")
    E(f"v_pk_add_f32 v[228:229], v[{ACC2+4}:{ACC2+5}], v[{ACC2+6}:{ACC2+7}]")
    E(f"v_pk_mul_f32 v[230:231], v[{ACC2+2}:{ACC2+3}], v[{ACC2+2}:{ACC2+3}]")
    for i in range(4, 16, 2):
        q = 226 + 4 * ((i >> 1) & 1)
        E(f"v_pk_fma_f32 v[{q}:{q+1}], v[{ACC2+i}:{ACC2+i+1}], v[{ACC2+i}:{ACC2+i+1}], v[{q}:{q+1}]")
        if i >= 8:
            sr = 224 + 4 * ((i >> 1) & 1)
            E(f"v_pk_add_f32 v[{sr}:{sr+1}], v[{sr}:{sr+1}], v[{ACC2+i}:{ACC2+i+1}]")
    E("v_pk_add_f32 v[224:225], v[224:225], v[228:229]")
    E("v_pk_add_f32 v[226:227], v[226:227], v[230:231]")
    E("v_add_f32 v224, v224, v225")
    E("v_add_f32 v225, v226, v227")
    E("v_mov_b32 v226, v224")
    E("v_mov_b32 v227, v225")
    E("v_permlane32_swap_b32 v224, v226")
    E("v_permlane32_swap_b32 v225, v227")
    E("v_pk_add_f32 v[224:225], v[224:225], v[226:227]")
    E("s_cmp_eq_u32 s32, 0")
    E("s_cbranch_scc1 K1_NOPW")
    E("ds_write_b64 v250, v[224:225]")
    E.label("K1_NOPW")
    V.wait("W1")
    E("v_add_u32 v31, 1, v31")
    E("s_waitcnt lgkmcnt(0)")
    stamp(E, 5)
    E("s_barrier")
    E("ds_read_b64 v[228:229], v250")
    E("s_lshl_b32 s34, s29, 2")
    E("s_add_u32 s39, s34, s31")
    E("s_mul_i32 s34, s39, 7168")
    E(f"s_add_u32 s47, s34, {PST}")
    E("s_lshl_b32 s35, s30, 1")
    E("s_add_u32 s48, s35, s32")
    E("s_lshl_b32 s35, s30, 9")
    E("s_add_u32 s34, s47, s35")
    order = [4 * c for c in range(7)] + [k for k in range(28) if k % 4]
    def w1reads(i):
        f = WFR + 4 * (i % 8); ks = order[i]
        for h in range(2):
            E(f"ds_read_b64_tr_b16 v[{f+2*h}:{f+1+2*h}], v{6 + (ks & 3)} offset:{(ks >> 2)*8192 + h*512}")
    for ks in range(6): w1reads(ks)
    E("s_cmp_lg_u32 s32, 0")
    E("s_cbranch_scc1 K1_NOPUB")
    E("s_waitcnt lgkmcnt(12)")
    E("v_add_f32 v224, v224, v228")
    E("v_add_f32 v226, v225, v229")
    E("v_mov_b32 v225, v31")
    E("v_mov_b32 v227, v31")
    E("s_mov_b32 exec_hi, 0")
    E(f"buffer_store_dwordx4 v[224:227], v24, s[{SWS}:{SWS+3}], s34 offen sc1")
    E("s_mov_b64 exec, -1")
    E.label("K1_NOPUB")
    stamp(E, 6)
    lq = [("w", k) for k in range(6) for _ in range(2)]
    def lwait(tag):
        idx = max(i for i, t in enumerate(lq) if t == tag)
        E(f"s_waitcnt lgkmcnt({min(15, len(lq) - 1 - idx)})")
    XW = 224
    for ks in range(28):
        lwait(("w", ks))
        x = XF + 4 * order[ks]; f = WFR + 4 * (ks % 8)
        c1 = "0" if ks == 0 else f"v[{ACC1}:{ACC1+15}]"
        E(f"v_mfma_f32_32x32x16_bf16 v[{ACC1}:{ACC1+15}], v[{f}:{f+3}], v[{x}:{x+3}], {c1}")
        if ks + 6 < 28: w1reads(ks + 6); lq += [("w", ks + 6)] * 2
        if ks < 7:
            E(f"v_mfma_f32_16x16x32_bf16 v[{SC1}:{SC1+3}], v[232:235], v[{f}:{f+3}], v[{SC1}:{SC1+3}]")
        if ks == 9:
            E(f"ds_write_b32 v254, v{SC1}")
            lq.append("a")
        if ks == 18:
            lwait("a")
            E("s_barrier")
            E("ds_read_b128 v[224:227], v255")
            lq.append("b")
        if ks == 22:
            lwait("b")
            E("v_add_f32 v224, v224, v225")
            E("v_add_f32 v226, v226, v227")
            E("v_add_f32 v224, v224, v226")
            E("ds_write_b32 v252, v224")
            for o in range(4): E(f"ds_read_b128 v[{208+4*o}:{211+4*o}], v253 offset:{32*o}")
            lq += ["c"] * 5
    for o in range(4): E(f"ds_read_b128 v[{148+4*o}:{151+4*o}], v249 offset:{16*o}")
    E("s_mov_b32 s46, 0")
    E("s_add_u32 s53, s47, 4096")
    GR = 112
    def ld_gran():
        for i in range(7):
            E(f"buffer_load_dwordx4 v[{GR+4*i}:{GR+4*i+3}], v24, s[{SWS}:{SWS+3}], s{47 if i < 4 else 53} offen offset:{1024*(i%4)} sc1")
    stamp(E, 7)
    ld_gran()
    E("s_waitcnt lgkmcnt(4)")
    gelu_block(ACC1, 208)
    for o in range(4):
        d = 64 + 4 * (o & 1) + 2 * (o >> 1)
        E(f"v_cvt_pk_bf16_f32 v{d}, v{ACC1+4*o}, v{ACC1+4*o+1}")
        E(f"v_cvt_pk_bf16_f32 v{d+1}, v{ACC1+4*o+2}, v{ACC1+4*o+3}")
    E("v_bfe_u32 v2, v1, 4, 1")
    E("v_mul_u32_u24 v2, 28672, v2")
    E("v_lshrrev_b32 v7, 5, v1")
    E("v_lshl_add_u32 v2, v7, 8, v2")
    E("v_and_b32 v7, 15, v1")
    E("v_lshl_add_u32 v2, v7, 4, v2")
    E("s_mul_i32 s34, s39, 57344")
    E("s_lshl_b32 s35, s48, 10")
    E("s_add_u32 s34, s34, s35")
    E(f"s_add_u32 s54, s34, {Z1F}")
    E("s_waitcnt lgkmcnt(0)")
    for i in range(8):
        src = XG + i // 2
        if i & 1: E(f"v_and_b32 v{72+i}, 0xffff0000, v{src}")
        else: E(f"v_lshlrev_b32 v{72+i}, 16, v{src}")
    for i in range(8): E(f"v_sub_f32 v{72+i}, v{72+i}, v{148+2*i}")
    for i in range(0, 8, 2): E(f"v_cvt_pk_bf16_f32 v{84+i//2}, v{72+i}, v{73+i}")
    for i in range(8):
        src = 84 + i // 2
        if i & 1: E(f"v_and_b32 v{72+i}, 0xffff0000, v{src}")
        else: E(f"v_lshlrev_b32 v{72+i}, 16, v{src}")
    for i in range(8): E(f"v_mul_f32 v{72+i}, v{72+i}, v{149+2*i}")
    for i in range(4): E(f"v_cvt_pk_bf16_f32 v{84+i}, v{79-2*i}, v{78-2*i}")
    E("v_lshrrev_b32 v3, 5, v1")
    E("v_and_b32 v7, 15, v1")
    E("v_lshl_add_u32 v3, v3, 4, v7")
    E("v_lshlrev_b32 v3, 12, v3")
    E("v_bfe_u32 v7, v1, 4, 1")
    E("v_lshlrev_b32 v7, 4, v7")
    E("v_sub_u32 v3, v3, v7")
    E("v_add_u32 v3, 16, v3")
    E("s_lshl_b32 s34, s43, 4")
    E("s_add_u32 s34, s34, s33")
    E("s_sub_u32 s34, 2032, s34")
    E("s_lshl_b32 s34, s34, 1")
    E("s_lshl_b32 s35, s30, 17")
    E("s_add_u32 s34, s34, s35")
    E(f"s_add_u32 s55, s34, {XNT}")
    E("v_and_b32 v6, 31, v1")
    E("v_mul_u32_u24 v6, 72, v6")
    E("v_lshrrev_b32 v7, 5, v1")
    E("v_lshl_add_u32 v6, v7, 3, v6")
    E("s_mul_i32 s34, s28, 2304")
    E("v_add_u32 v6, s34, v6")
    E("v_lshrrev_b32 v7, 4, v1")
    E("v_bfe_u32 v8, v1, 2, 2")
    E("v_lshl_add_u32 v7, v7, 3, v8")
    E("v_mul_u32_u24 v7, 72, v7")
    E("v_and_b32 v8, 3, v1")
    E("v_lshl_add_u32 v7, v8, 3, v7")
    E("v_add_u32 v7, s34, v7")
    for a in range(2):
        E("s_lshl_b32 s34, s48, 1")
        E(f"s_add_u32 s34, s34, {a}")
        E("s_mul_i32 s35, s34, 37")
        E("s_lshr_b32 s35, s35, 8")
        E("s_mul_i32 s40, s35, 7")
        E("s_sub_u32 s34, s34, s40")
        E("s_lshl_b32 s35, s35, 6")
        E("s_add_u32 s35, s35, s39")
        E("s_mul_i32 s35, s35, 7")
        E("s_add_u32 s34, s34, s35")
        E(f"s_lshl_b32 s{50+a}, s34, 10")
    stamp(E, 8)
    E.label("K1_POLL2")
    E("s_waitcnt vmcnt(0)")
    E("v_mov_b32 v8, 0")
    for i in range(7):
        E(f"v_xor_b32 v{GR+4*i+1}, v31, v{GR+4*i+1}")
        E(f"v_xor_b32 v{GR+4*i+3}, v31, v{GR+4*i+3}")
        E(f"v_or3_b32 v8, v8, v{GR+4*i+1}, v{GR+4*i+3}")
    E("v_cmp_ne_u32 vcc, 0, v8")
    E("s_nop 4")
    E("s_cbranch_vccz K1_POLL2_OK")
    E("s_sleep 1")
    ld_gran()
    E("s_add_u32 s46, s46, 1")
    E("s_cmp_lt_u32 s46, 0x40000")
    E("s_cbranch_scc1 K1_POLL2")
    E("s_waitcnt vmcnt(0)")
    E.label("K1_POLL2_OK")
    stamp(E, 9)
    E("s_or_b32 s34, s30, s28")
    E("s_cmp_lg_u32 s34, 0")
    E("s_cbranch_scc1 K1_NOTAGW")
    E("s_mov_b64 exec, 1")
    E(f"buffer_store_dword v31, v30, s[{SWS}:{SWS+3}], s49 offen sc1")
    E("s_mov_b64 exec, -1")
    E.label("K1_NOTAGW")
    E(f"buffer_store_dwordx4 v[64:67], v2, s[{SWS}:{SWS+3}], s54 offen")
    E(f"buffer_store_dwordx4 v[68:71], v2, s[{SWS}:{SWS+3}], s54 offen offset:512")
    E(f"buffer_store_dwordx4 v[84:87], v3, s[{SWS}:{SWS+3}], s55 offen")
    regs = [GR + 4 * i for i in range(7)]
    while len(regs) > 1:
        nxt = []
        for i in range(0, len(regs) - 1, 2):
            E(f"v_add_f32 v{regs[i]}, v{regs[i]}, v{regs[i+1]}")
            E(f"v_add_f32 v{regs[i]+2}, v{regs[i]+2}, v{regs[i+1]+2}")
            nxt.append(regs[i])
        if len(regs) & 1: nxt.append(regs[-1])
        regs = nxt
    E("v_mov_b32 v116, v112")
    E("v_mov_b32 v117, v114")
    E("v_mov_b32 v118, v116")
    E("v_mov_b32 v119, v117")
    E("v_permlane32_swap_b32 v116, v118")
    E("v_permlane32_swap_b32 v117, v119")
    E("v_add_f32 v116, v116, v118")
    E("v_add_f32 v117, v117, v119")
    ln_stats(116, 117, 896)
    E("v_mul_f32 v116, v116, v117")
    for i in range(0, 16, 2):
        E(f"v_pk_fma_f32 v[{ACC2+i}:{ACC2+i+1}], v[{ACC2+i}:{ACC2+i+1}], v[116:117], v[116:117] op_sel:[0,1,0] op_sel_hi:[1,1,0] neg_lo:[0,0,1] neg_hi:[0,0,1]")
    for i in range(8): E(f"v_cvt_pk_bf16_f32 v{96+i}, v{ACC2+2*i}, v{ACC2+2*i+1}")
    for o in range(4): E(f"ds_write_b64 v6, v[{96+2*o}:{97+2*o}] offset:{16*o}")
    E("s_waitcnt lgkmcnt(0)")
    for a in range(2):
        for h in range(2):
            E(f"ds_read_b64_tr_b16 v[{104+4*a+2*h}:{105+4*a+2*h}], v7 offset:{288*h+32*a}")
    E("s_waitcnt lgkmcnt(2)")
    E(f"buffer_store_dwordx4 v[104:107], v24, s[{SWS}:{SWS+3}], s50 offen")
    E("s_waitcnt lgkmcnt(0)")
    E(f"buffer_store_dwordx4 v[108:111], v24, s[{SWS}:{SWS+3}], s51 offen")
    stamp(E, 10)
    stamp_flush(E, 11, SWS, 0)
    E("s_endpgm")

    E.label("K1_AUX")
    WOFB, GS = 132352, 66176
    E("s_sub_u32 s29, s2, 224")
    E("s_waitcnt lgkmcnt(0)")
    load_srds(E, [("lar", 32), ("aim", 36), ("cre", 40), ("cim", 44), ("ldt", 8)])
    E("v_mov_b32 v30, 0")
    E("v_lshlrev_b32 v3, 4, v1")
    E("s_mul_i32 s56, s29, 28672")
    E("s_lshl_b32 s57, s28, 10")
    E("s_add_u32 s56, s56, s57")
    E("s_and_b32 s30, s28, 3")
    E("s_lshr_b32 s31, s28, 2")
    E(f"s_mul_i32 s12, s31, {GS}")
    E("v_and_b32 v2, 255, v0")
    E("v_lshlrev_b32 v4, 4, v2")
    E("v_lshlrev_b32 v2, 1, v2")
    E("s_mul_i32 s13, s29, 6")
    E("s_add_u32 s13, s13, s31")
    E("v_and_b32 v25, 15, v1")
    E("v_lshrrev_b32 v26, 4, v1")
    E("s_waitcnt lgkmcnt(0)")
    for r in range(3):
        E(f"s_add_u32 s48, s13, {2*r}")
        E("s_lshl_b32 s49, s48, 2")
        E("s_add_u32 s49, s49, 2")
        E("s_lshl_b32 s48, s49, 8")
        E(f"buffer_load_ushort v{216+r}, v30, s[8:11], s49 offen")
        for k, sr in enumerate((32, 36, 40, 44)):
            E(f"buffer_load_ushort v{200+4*r+k}, v2, s[{sr}:{sr+3}], s48 offen")
    E("s_lshl_b32 s50, s29, 3")
    E("s_add_u32 s50, s50, s28")
    E("s_mul_i32 s51, s50, 896")
    E("s_lshl_b32 s50, s50, 15")
    E("v_lshlrev_b32 v22, 7, v1")
    E("v_min_u32 v23, 6, v1")
    E("v_lshlrev_b32 v23, 7, v23")
    E(f"v_add_u32 v24, {4*TABW}, v4")
    E("v_add_u32 v24, s12, v24")
    E("s_mov_b32 s15, 0")
    E("s_waitcnt vmcnt(10)")
    stamp(E, 1)
    for k, sr in enumerate((32, 36, 40, 44)):
        E(f"buffer_load_dword v{16+k}, v23, s[{sr}:{sr+3}], s51 offen")
    E("s_lshr_b32 s48, s50, 15")
    E("s_mul_i32 s48, s48, 3200")
    E("v_min_u32 v21, 24, v1")
    E("v_lshlrev_b32 v21, 7, v21")
    E(f"buffer_load_dword v21, v21, s[{SWO}:{SWO+3}], s48 offen")
    E("s_waitcnt vmcnt(5)")
    E.label("K1A_LOOP")
    for k in range(4): E(f"v_mov_b32 v{5+k}, v{200+k}")
    E("v_lshlrev_b32 v9, 16, v216")
    for k in range(8): E(f"v_mov_b32 v{200+k}, v{204+k}")
    for k in range(2): E(f"v_mov_b32 v{216+k}, v{217+k}")
    stamp(E, 3)
    kgen(E, "K1A", "s30", "s12", 4 * TABW, stamps=4)
    E("ds_read_b128 v[32:35], v24")
    E("s_lshl_b32 s48, s13, 12")
    E(f"s_add_u32 s48, s48, {KPG}")
    E("s_add_u32 s13, s13, 2")
    E("s_add_u32 s15, s15, 1")
    E("s_cmp_lt_u32 s15, 3")
    E("s_waitcnt lgkmcnt(0)")
    E(f"buffer_store_dwordx4 v[32:35], v4, s[{SWS}:{SWS+3}], s48 offen")
    E("s_cbranch_scc1 K1A_LOOP")
    stamp(E, 2)
    if STAMPS:
        for i in range(9, 11): stamp(E, i)
        stamp_flush(E, 11, SWS, 0)
    E.label("K1_END")
    E("s_endpgm")
```

```python
from gen_common import *
import math
VGPR = 256
GRID = 512
LDS = 81920

class VM:
    def __init__(s, E): s.E = E; s.q = []; s.done = 0
    def issue(s, tag): s.q.append(tag)
    def wait(s, tag):
        idx = max(i for i, t in enumerate(s.q) if t == tag)
        if idx < s.done: return
        n = len(s.q) - 1 - idx
        assert n < 64
        s.E(f"s_waitcnt vmcnt({n})"); s.done = idx + 1

def gemm(E):
    SWSP, SWS, SB = 8, 12, 16
    load_srds(E, [("wsp", SWSP), ("ws", SWS), ("bsp", SB)])
    stamp(E, 0)
    E("s_and_b32 s48, s2, 7")
    E("s_lshr_b32 s49, s2, 3")
    E("s_lshr_b32 s29, s48, 1")
    E("s_lshl_b32 s29, s29, 3")
    E("s_and_b32 s50, s49, 7")
    E("s_add_u32 s29, s29, s50")
    E("s_and_b32 s30, s48, 1")
    E("s_lshl_b32 s30, s30, 2")
    E("s_lshr_b32 s50, s49, 3")
    E("s_add_u32 s30, s30, s50")
    E("v_lshrrev_b32 v8, 3, v1")
    E("v_and_b32 v9, 7, v1")
    E("v_lshrrev_b32 v10, 4, v1")
    E("v_xor_b32 v9, v9, v10")
    E("v_lshlrev_b32 v8, 12, v8")
    E("v_lshl_add_u32 v2, v9, 4, v8")
    E("v_xor_b32 v3, 64, v2")
    E("s_lshl_b32 s48, s29, 18")
    E("s_lshl_b32 s49, s28, 10")
    E("s_add_u32 s48, s48, s49")
    E("s_lshl_b32 s49, s28, 1")
    for q in range(8):
        E(f"s_xor_b32 s50, s49, {q}")
        E("s_lshl_b32 s50, s50, 15")
        E(f"s_add_u32 s{32+q}, s48, s50")
    E("s_lshl_b32 s31, s28, 14")
    E("v_lshlrev_b32 v6, 4, v1")
    E("v_add_u32 v7, 4096, v6")
    E("s_lshl_b32 s40, s30, 6")
    E("s_lshl_b32 s49, s28, 4")
    E("s_add_u32 s40, s40, s49")
    E("s_mul_i32 s40, s40, 7168")
    V = VM(E)
    ACC, ZB, WF = 16, 128, 212
    E("s_waitcnt lgkmcnt(0)")
    def wdma(kp, q):
        E(f"s_add_u32 m0, s31, {(kp & 1) * 8192 + q * 1024}")
        E(f"buffer_load_dwordx4 v{2 + (q & 1)}, s[{SWSP}:{SWSP+3}], s{32+q} offen lds")
        V.issue(("W", kp))
        if q == 7:
            E("v_add_u32 v2, 128, v2")
            E("v_add_u32 v3, 128, v3")
    def zbase(ks): E(f"s_add_u32 s41, s40, {ks * 7168}")
    def zld(ks, a):
        r = ZB + 28 * (ks % 3) + 4 * a
        E(f"buffer_load_dwordx4 v[{r}:{r+3}], v{6 + (a >> 2)}, s[{SWS}:{SWS+3}], s41 offen offset:{(a & 3) * 1024}")
        V.issue(("Z", ks, a))
    for q in range(8): wdma(0, q)
    zbase(0)
    for a in range(7): zld(0, a)
    zbase(1)
    for a in range(7): zld(1, a)
    for q in range(8): wdma(1, q)
    zbase(2)
    for a in range(7): zld(2, a)
    E("v_and_b32 v8, 15, v1")
    E("v_bfe_u32 v9, v1, 1, 3")
    E("v_xor_b32 v9, v9, v10")
    E("v_lshlrev_b32 v8, 7, v8")
    E("v_lshl_add_u32 v4, v9, 4, v8")
    E("v_add_u32 v4, s31, v4")
    E("v_xor_b32 v5, 64, v4")
    E("s_lshl_b32 s48, s29, 2")
    E("s_add_u32 s48, s48, s28")
    E("s_lshl_b32 s57, s48, 5")
    E("s_mul_i32 s48, s48, 28672")
    E(f"s_add_u32 s48, s48, {Z1F}")
    E("s_mul_i32 s49, s30, 7")
    for a in range(7):
        E(f"s_add_u32 s42, s49, {a}")
        E("s_lshr_b32 s43, s42, 1")
        E("s_lshl_b32 s43, s43, 10")
        E("s_and_b32 s42, s42, 1")
        E("s_lshl_b32 s42, s42, 3")
        E("s_add_u32 s42, s42, s43")
        E(f"s_add_u32 s{50+a}, s42, s48")
    E("v_add_u32 v11, 0x400000, v6")
    E("v_and_b32 v12, 15, v1")
    E("v_lshlrev_b32 v12, 1, v12")
    def wread(kp, h):
        for b in range(4):
            r = WF + 16 * h + 4 * b
            E(f"ds_read_b128 v[{r}:{r+3}], v{4+h} offset:{(kp & 1) * 8192 + b * 2048}")
    V.wait(("W", 0))
    stamp(E, 1)
    wread(0, 0)
    Z1R = ZB + 28 * 1
    for ks in range(16):
        kp, h = ks >> 1, ks & 1
        E("s_waitcnt lgkmcnt(0)")
        if h == 0: wread(kp, 1)
        if ks + 3 < 16: zbase(ks + 3)
        if ks in (4, 8, 12): stamp(E, 1 + ks // 4)
        for a in range(7):
            V.wait(("Z", ks, a))
            z = ZB + 28 * (ks % 3) + 4 * a
            for b in range(4):
                c = ACC + 16 * a + 4 * b; w = WF + 16 * h + 4 * b
                src = "0" if ks == 0 else f"v[{c}:{c+3}]"
                E(f"v_mfma_f32_16x16x32_bf16 v[{c}:{c+3}], v[{z}:{z+3}], v[{w}:{w+3}], {src}")
            if ks + 3 < 16: zld(ks + 3, a)
            if h == 0 and kp + 2 < 8:
                if a == 1: E("s_waitcnt lgkmcnt(0)")
                if 2 <= a <= 5:
                    wdma(kp + 2, 2 * (a - 2)); wdma(kp + 2, 2 * (a - 2) + 1)
            if h == 1 and a == 3 and kp + 1 < 8:
                V.wait(("W", kp + 1))
                wread(kp + 1, 0)
            if ks == 14:
                E(f"buffer_load_dwordx2 v[{Z1R+2*a}:{Z1R+2*a+1}], v6, s[{SWS}:{SWS+3}], s{50+a} offen")
                V.issue("z1")
                if a == 0:
                    E(f"buffer_load_ushort v13, v12, s[{SB}:{SB+3}], s57 offen")
                    V.issue("z1")
    stamp(E, 5)
    E("v_add_u32 v8, s31, v6")
    E("v_xor_b32 v9, 0x4000, v8")
    E("v_xor_b32 v10, 0xC000, v8")
    for a in range(7):
        for i, b in enumerate((1, 3)):
            c = ACC + 16 * a + 4 * b
            E(f"ds_write_b128 v8, v[{c}:{c+3}] offset:{(2*a+i)*1024}")
    E("s_waitcnt lgkmcnt(0)")
    E("s_barrier")
    T = ZB + 56
    for a in range(7):
        for i in range(2):
            r = T + 4 * (2 * a + i)
            E(f"ds_read_b128 v[{r}:{r+3}], v9 offset:{(2*a+i)*1024}")
    for a in range(7):
        E(f"s_waitcnt lgkmcnt({12 - 2*a})")
        for i, b in enumerate((0, 2)):
            c = ACC + 16 * a + 4 * b; r = T + 4 * (2 * a + i)
            E(f"v_pk_add_f32 v[{c}:{c+1}], v[{c}:{c+1}], v[{r}:{r+1}]")
            E(f"v_pk_add_f32 v[{c+2}:{c+3}], v[{c+2}:{c+3}], v[{r+2}:{r+3}]")
    for a in range(7):
        c = ACC + 16 * a + 8
        E(f"ds_write_b128 v9, v[{c}:{c+3}] offset:{a*1024}")
    E("s_waitcnt lgkmcnt(0)")
    E("s_barrier")
    for a in range(7):
        r = T + 4 * a
        E(f"ds_read_b128 v[{r}:{r+3}], v10 offset:{a*1024}")
    stamp(E, 6)
    V.wait("z1")
    E("v_lshlrev_b32 v13, 16, v13")
    for a in range(7):
        E(f"s_waitcnt lgkmcnt({6 - a})")
        c = ACC + 16 * a; r = T + 4 * a; t = c + 4
        E(f"v_pk_add_f32 v[{c}:{c+1}], v[{c}:{c+1}], v[{r}:{r+1}]")
        E(f"v_pk_add_f32 v[{c+2}:{c+3}], v[{c+2}:{c+3}], v[{r+2}:{r+3}]")
        E(f"v_cvt_pk_bf16_f32 v{t}, v{c}, v{c+1}")
        E(f"v_cvt_pk_bf16_f32 v{t+1}, v{c+2}, v{c+3}")
        E(f"v_lshlrev_b32 v{c}, 16, v{t}")
        E(f"v_and_b32 v{c+1}, 0xffff0000, v{t}")
        E(f"v_lshlrev_b32 v{c+2}, 16, v{t+1}")
        E(f"v_and_b32 v{c+3}, 0xffff0000, v{t+1}")
        for k in range(4): E(f"v_add_f32 v{c+k}, v{c+k}, v13")
        E(f"v_cvt_pk_bf16_f32 v{t}, v{c}, v{c+1}")
        E(f"v_cvt_pk_bf16_f32 v{t+1}, v{c+2}, v{c+3}")
        E(f"v_lshlrev_b32 v{c}, 16, v{t}")
        E(f"v_and_b32 v{c+1}, 0xffff0000, v{t}")
        E(f"v_lshlrev_b32 v{c+2}, 16, v{t+1}")
        E(f"v_and_b32 v{c+3}, 0xffff0000, v{t+1}")
        z = Z1R + 2 * a
        E(f"v_lshlrev_b32 v{t}, 16, v{z}")
        E(f"v_and_b32 v{t+1}, 0xffff0000, v{z}")
        E(f"v_lshlrev_b32 v{t+2}, 16, v{z+1}")
        E(f"v_and_b32 v{t+3}, 0xffff0000, v{z+1}")
        E(f"v_pk_mul_f32 v[{c}:{c+1}], v[{c}:{c+1}], v[{t}:{t+1}]")
        E(f"v_pk_mul_f32 v[{c+2}:{c+3}], v[{c+2}:{c+3}], v[{t+2}:{t+3}]")
        E(f"v_cvt_pk_bf16_f32 v{t+4}, v{c}, v{c+1}")
        E(f"v_cvt_pk_bf16_f32 v{t+5}, v{c+2}, v{c+3}")
        E(f"buffer_store_dwordx2 v[{t+4}:{t+5}], v11, s[{SWS}:{SWS+3}], s{50+a} offen")
    stamp(E, 7)
    stamp_flush(E, 8, SWS, 1)
    E("s_endpgm")

TABW = 57 * 272
URB = 4 * TABW
KPB = URB + 4608 + 16
KXB = 70752
KX1 = 4160
UR2 = 40960
LOG2E = 1.4426950408889634

def kgen(E, P, swq, sgb, kpoff, stamps=0, pre_write=None):
    import struct
    def exp_acc(dst, src):
        hi32 = struct.unpack("<f", struct.pack("<f", LOG2E))[0]; lo = LOG2E - hi32
        E(f"v_mul_f32 v12, {f32hex(hi32)}, {src}")
        E(f"v_mov_b32 v14, {f32hex(hi32)}")
        E(f"v_fma_f32 v13, {src}, v14, -v12")
        E(f"v_fmac_f32 v13, {f32hex(lo)}, {src}")
        E(f"v_exp_f32 v12, v12")
        E(f"v_mul_f32 v13, {f32hex(math.log(2.0))}, v13")
        E(f"v_fma_f32 {dst}, v12, v13, v12")
    E("v_lshlrev_b32 v5, 16, v5")
    exp_acc("v9", "v9"); bf16r(E, "v9", "v9")
    exp_acc("v5", "v5"); bf16r(E, "v5", "v5")
    if stamps: stamp(E, stamps)
    for r in (6, 7, 8): E(f"v_lshlrev_b32 v{r}, 16, v{r}")
    E("v_mul_f32 v5, -v5, v9")
    E("v_mul_f32 v6, v6, v9")
    T, F, H, W = 32, 48, 66, 84
    TH, FH, HH, WH, GH = 96, 104, 120, 138, 140
    E(f"v_mul_f32 v{H}, v7, v9")
    E(f"v_mul_f32 v{H+1}, v8, v9")
    E(f"v_mul_f32 v{H}, {f32hex(64.0)}, v{H}")
    E(f"v_mul_f32 v{H+1}, {f32hex(64.0)}, v{H+1}")
    for m, dst, t in ((1, T + 2, 27), (8, F + 2, 28), (128, W, 29)):
        E(f"v_mul_f32 v{t}, {f32hex(m * LOG2E)}, v5")
        E(f"v_mul_f32 v{dst+1}, {f32hex(m / (2 * math.pi))}, v6")
        E(f"v_exp_f32 v{t}, v{t}")
        E(f"v_cos_f32 v{dst}, v{dst+1}")
        E(f"v_sin_f32 v{dst+1}, v{dst+1}")
    for m, dst, t in ((1, T + 2, 27), (8, F + 2, 28), (128, W, 29)):
        E(f"v_mul_f32 v{dst}, v{dst}, v{t}")
        E(f"v_mul_f32 v{dst+1}, v{dst+1}, v{t}")
    def cmul_batch(lst):
        for z, x, y in lst:
            E(f"v_mul_f32 v{z}, v{x}, v{y}")
            E(f"v_mul_f32 v{z+1}, v{x+1}, v{y}")
        for z, x, y in lst:
            E(f"v_fma_f32 v{z}, -v{x+1}, v{y+1}, v{z}")
            E(f"v_fmac_f32 v{z+1}, v{x}, v{y+1}")
    def hmul_batch(lst, rows):
        for z, x, y in lst: E(f"v_pk_mul_f16 v{z}, v{x}, v{y} op_sel:[0,0] op_sel_hi:[1,0]")
        for (z, x, y), r in zip(lst, rows):
            E(f"v_pk_fma_f16 v{z}, v{x}, v{y}, v{z} op_sel:[1,1,0] op_sel_hi:[0,1,1] neg_lo:[1,0,0]")
        for (z, x, y), r in zip(lst, rows): E(f"ds_write_b32 v11, v{z} offset:{r * 272}")
    t = lambda k: T + 2 * k
    f = lambda k: F + 2 * k
    h = lambda k: H + 2 * k
    w = lambda i: W + 2 * i
    E(f"s_mul_i32 s48, {swq}, {TABW}")
    if sgb: E(f"s_add_u32 s48, s48, {sgb}")
    E("v_lshlrev_b32 v11, 2, v1")
    E("v_add_u32 v11, s48, v11")
    def put(row, dst, src, neg):
        E(f"v_cvt_pk_f16_f32 v{dst}, v{src}, {'-' if neg else ''}v{src+1}")
        if row is not None: E(f"ds_write_b32 v11, v{dst} offset:{row * 272}")
    hrow = [0, 8, 16, 20, 24, 26, 28, 30] + [32 + k for k in range(8)]
    def sq_batch(lst):
        for z, x in lst:
            E(f"v_mul_f32 v{z}, v{x}, v{x}")
            E(f"v_add_f32 v{z+1}, v{x}, v{x}")
        for z, x in lst:
            E(f"v_fma_f32 v{z}, -v{x+1}, v{x+1}, v{z}")
            E(f"v_mul_f32 v{z+1}, v{z+1}, v{x+1}")
    def hm(lst):
        for z, x, y, r in lst: E(f"v_pk_mul_f16 v{z}, v{x}, v{y} op_sel:[0,0] op_sel_hi:[1,0]")
        for z, x, y, r in lst: E(f"v_pk_fma_f16 v{z}, v{x}, v{y}, v{z} op_sel:[1,1,0] op_sel_hi:[0,1,1] neg_lo:[1,0,0]")
        for z, x, y, r in lst:
            if r is not None: E(f"ds_write_b32 v11, v{z} offset:{r * 272}")
    WQ = 180
    sq_batch([(t(2), t(1)), (f(2), f(1)), (w(1), w(0))])
    if pre_write: pre_write()
    E("v_mov_b32 v30, 0x3c00")
    E(f"ds_write_b32 v11, v30 offset:{41 * 272}")
    put(0, HH, h(0), True); put(42, FH + 1, f(1), False); put(None, TH + 1, t(1), True); put(None, WQ, w(0), True)
    sq_batch([(t(4), t(2)), (f(4), f(2)), (w(2), w(1))])
    put(43, FH + 2, f(2), False); put(None, TH + 2, t(2), True); put(None, WQ + 1, w(1), True)
    sq_batch([(f(8), f(4)), (w(3), w(2))])
    put(45, FH + 4, f(4), False); put(None, TH + 4, t(4), True); put(None, WQ + 2, w(2), True)
    hm([(HH + 1, HH, WQ, hrow[1]), (HH + 2, HH, WQ + 1, hrow[2]), (TH + 3, TH + 2, TH + 1, None), (FH + 3, FH + 2, FH + 1, 44),
        (HH + 4, HH, WQ + 2, hrow[4]), (TH + 5, TH + 4, TH + 1, None), (TH + 6, TH + 4, TH + 2, None),
        (FH + 5, FH + 4, FH + 1, 46), (FH + 6, FH + 4, FH + 2, 47)])
    put(49, FH + 8, f(8), False); put(None, WH, w(3), True)
    hm([(HH + 3, HH + 1, WQ + 1, hrow[3]), (HH + 5, HH + 1, WQ + 2, hrow[5]), (HH + 6, HH + 2, WQ + 2, hrow[6]),
        (TH + 7, TH + 4, TH + 3, None), (FH + 7, FH + 4, FH + 3, 48)] +
       [(HH + 8 + k, HH + k, WH, hrow[8 + k]) for k in (0, 1, 2, 4)] + [(FH + 8 + k, FH + 8, FH + k, 49 + k) for k in range(1, 7)])
    if stamps > 2: stamp(E, stamps + 2)
    hm([(HH + 7, HH + 3, WQ + 2, hrow[7]), (FH + 15, FH + 8, FH + 7, 56)] + [(HH + 8 + k, HH + k, WH, hrow[8 + k]) for k in (3, 5, 6)])
    rows = [(8 * hh + e, HH + hh, TH + e) for hh in range(2) for e in range(1, 8)]
    rows += [(16 + 4 * hh + e, HH + 2 + hh, TH + 2 * e) for hh in range(2) for e in range(1, 4)]
    rows += [(24 + 2 * hh + 1, HH + 4 + hh, TH + 4) for hh in range(4)]
    rows += [(40, HH + 8, WH), (39, HH + 7, WH)]
    for lo_, hi_ in ((0, 13), (13, 26)):
        hmul_batch([(GH + i, x, y) for i, (r, x, y) in list(enumerate(rows))[lo_:hi_]], [r for r, x, y in rows[lo_:hi_]])
    if stamps: stamp(E, stamps + 1)
    E("v_mul_u32_u24 v12, 272, v25")
    E("v_lshl_add_u32 v12, v26, 4, v12")
    E("v_add_u32 v12, s48, v12")
    FRG = 32
    for q in range(4):
        E(f"ds_read_b128 v[{FRG+16*q}:{FRG+16*q+3}], v12 offset:{41*272 + 64*q}")
        for m in range(3):
            if q == 3 and m == 2: E("s_waitcnt lgkmcnt(14)")
            E(f"ds_read_b128 v[{FRG+16*q+4+4*m}:{FRG+16*q+7+4*m}], v12 offset:{16*m*272 + 64*q}")
    E("v_lshlrev_b32 v13, 4, v1")
    E("v_add_u32 v15, s48, v13")
    E(f"s_lshl_b32 s48, {swq}, 10")
    if sgb: E(f"s_add_u32 s48, s48, {sgb}")
    E("v_add_u32 v13, s48, v13")
    E(f"v_mov_b32 v14, {kpoff}")
    E("v_lshl_add_u32 v14, v25, 4, v14")
    if sgb: E(f"v_add_u32 v14, {sgb}, v14")
    for q in range(4):
        for m in range(3):
            E(f"s_waitcnt lgkmcnt({14 - 4*q - m})")
            c = 160 + 4 * m
            E(f"v_mfma_f32_16x16x32_f16 v[{c}:{c+3}], v[{FRG+16*q+4+4*m}:{FRG+16*q+7+4*m}], v[{FRG+16*q}:{FRG+16*q+3}], {'0' if q == 0 else f'v[{c}:{c+3}]'}")
    for m in range(3): E(f"ds_write_b128 v15, v[{160+4*m}:{163+4*m}] offset:{1024*m}")
    E("s_waitcnt lgkmcnt(0)")
    E("s_barrier")
    if stamps > 2: stamp(E, stamps + 3)
    E(f"s_cmp_eq_u32 {swq}, 3")
    E(f"s_cbranch_scc1 {P}_SKIPM")
    for ww in range(4): E(f"ds_read_b128 v[{160+4*ww}:{163+4*ww}], v13 offset:{ww*TABW}")
    E("s_waitcnt lgkmcnt(0)")
    for k in range(4): E(f"v_add_f32 v{160+k}, v{160+k}, v{164+k}")
    for k in range(4): E(f"v_add_f32 v{168+k}, v{168+k}, v{172+k}")
    for k in range(4): E(f"v_add_f32 v{160+k}, v{160+k}, v{168+k}")
    for k in range(4): E(f"v_mul_f32 v{160+k}, {f32hex(2.0 / 64)}, v{160+k}")
    E("v_cvt_pk_bf16_f32 v164, v160, v161")
    E("v_cvt_pk_bf16_f32 v165, v162, v163")
    E(f"s_cmp_eq_u32 {swq}, 1")
    E(f"s_cbranch_scc1 {P}_M1")
    E(f"s_cmp_eq_u32 {swq}, 2")
    E(f"s_cbranch_scc1 {P}_M2")
    E("v_lshrrev_b32 v12, 1, v26")
    E("v_lshl_add_u32 v14, v12, 8, v14")
    E("v_and_b32 v12, 1, v26")
    E("v_lshl_add_u32 v14, v12, 3, v14")
    E("ds_write_b64 v14, v[164:165]")
    E(f"s_branch {P}_SKIPM")
    E.label(f"{P}_M1")
    E("v_lshl_add_u32 v12, v26, 8, v14")
    E("v_lshl_add_u32 v13, v26, 9, v14")
    E("s_mov_b32 exec_hi, 0")
    E("ds_write_b16 v12, v164 offset:512")
    E("ds_write_b16_d16_hi v12, v164 offset:516")
    E("ds_write_b16 v12, v165 offset:520")
    E("ds_write_b16_d16_hi v12, v165 offset:524")
    E("s_mov_b32 exec_hi, -1")
    E("s_mov_b32 exec_lo, 0")
    E("ds_write_b16 v13, v164")
    E("ds_write_b16_d16_hi v13, v164 offset:8")
    E("ds_write_b16 v13, v165 offset:256")
    E("ds_write_b16_d16_hi v13, v165 offset:264")
    E("s_mov_b64 exec, -1")
    E(f"s_branch {P}_SKIPM")
    E.label(f"{P}_M2")
    E("v_lshl_add_u32 v12, v26, 10, v14")
    E("s_mov_b32 exec_hi, 0")
    E("ds_write_b16 v12, v164 offset:2048")
    E("ds_write_b16_d16_hi v12, v164 offset:2304")
    E("ds_write_b16 v12, v165 offset:2560")
    E("ds_write_b16_d16_hi v12, v165 offset:2816")
    E("s_mov_b32 exec_hi, 1")
    E("s_mov_b32 exec_lo, 0")
    E("ds_write_b16 v12, v164 offset:2046")
    E("s_mov_b64 exec, -1")
    E.label(f"{P}_SKIPM")
    if stamps > 2: stamp(E, stamps + 4)
    E("s_waitcnt lgkmcnt(0)")
    E("s_barrier")

def conv(E):
    SWS, SLA, SAI, SCR, SCI, SDT, SDS = 12, 20, 24, 32, 36, 40, 44
    load_srds(E, [("ws", SWS), ("lar", SLA), ("aim", SAI), ("cre", SCR), ("cim", SCI), ("ldt", SDT), ("dsk", SDS), ("wout", 8)])
    stamp(E, 0)
    E("s_sub_u32 s29, s2, 256")
    E("s_mov_b32 s52, 0")
    E("s_add_u32 s48, s29, 192")
    E("s_lshl_b32 s29, s29, 1")
    E("s_cmp_ge_u32 s29, 384")
    E("s_cselect_b32 s29, s48, s29")
    E("s_cselect_b32 s52, 1, 0")
    E("v_lshlrev_b32 v2, 1, v0")
    E("s_lshl_b32 s30, s29, 9")
    E("s_lshl_b32 s31, s29, 1")
    E("v_mov_b32 v3, 0")
    E("v_lshlrev_b32 v4, 4, v1")
    E("s_lshl_b32 s48, s29, 12")
    E("s_lshl_b32 s51, s28, 10")
    E("s_add_u32 s50, s48, s51")
    E(f"s_add_u32 s50, s50, {XNT}")
    E(f"s_add_u32 s51, s51, {URB}")
    E("s_mov_b32 m0, s51")
    E(f"s_mov_b32 s53, {URB}")
    E("s_waitcnt lgkmcnt(0)")
    E(f"buffer_load_ushort v9, v3, s[{SDT}:{SDT+3}], s31 offen")
    E(f"buffer_load_ushort v5, v2, s[{SLA}:{SLA+3}], s30 offen")
    E(f"buffer_load_ushort v6, v2, s[{SAI}:{SAI+3}], s30 offen")
    E(f"buffer_load_ushort v7, v2, s[{SCR}:{SCR+3}], s30 offen")
    E(f"buffer_load_ushort v8, v2, s[{SCI}:{SCI+3}], s30 offen")
    E(f"buffer_load_ushort v10, v3, s[{SDS}:{SDS+3}], s31 offen")
    E(f"buffer_load_ushort v205, v3, s[{SDS}:{SDS+3}], s31 offen offset:2")
    E(f"buffer_load_dwordx4 v4, s[{SWS}:{SWS+3}], s50 offen lds")
    E("s_lshl_b32 s48, s29, 11")
    E("s_lshl_b32 s49, s28, 10")
    E("s_add_u32 s48, s48, s49")
    E(f"s_add_u32 s48, s48, {KPG}")
    E("s_add_u32 s50, s50, 4096")
    E("s_mov_b32 s54, s52")
    E(f"buffer_load_dwordx4 v[206:209], v4, s[{SWS}:{SWS+3}], s48 offen")
    E(f"buffer_load_dwordx4 v[210:213], v4, s[{SWS}:{SWS+3}], s50 offen")
    E("v_mov_b32 v12, 0"); E("v_mov_b32 v13, 0")
    E("v_lshlrev_b32 v11, 3, v1")
    E(f"v_add_u32 v14, {URB + 4096}, v11")
    E("ds_write_b64 v14, v[12:13]")
    E("v_and_b32 v11, 24, v11")
    E(f"v_add_u32 v11, {KXB}, v11")
    E("ds_write_b64 v11, v[12:13]")
    E(f"ds_write_b64 v11, v[12:13] offset:{KX1}")
    E(f"v_mov_b32 v11, {KPB - 8}")
    E("ds_write_b64 v11, v[12:13]")
    GA = 16
    E("v_lshlrev_b32 v11, 3, v0")
    for i in range(9):
        E(f"v_add_u32 v{GA+i}, {i-1}, v11")
    for i in range(9): E(f"v_cvt_f32_i32 v{GA+i}, v{GA+i}")
    for i in range(9): bf16r(E, f"v{GA+i}", f"v{GA+i}")
    for i in range(9): E(f"v_cvt_i32_f32 v{GA+i}, v{GA+i}")
    for i in range(9): E(f"v_min_i32 v{GA+i}, 2047, v{GA+i}")
    E(f"v_mov_b32 v11, {KPB}")
    for i in range(9): E(f"v_lshl_add_u32 v{GA+i}, v{GA+i}, 1, v11")
    E("v_and_b32 v25, 15, v1")
    E("v_lshrrev_b32 v26, 4, v1")
    E("s_waitcnt vmcnt(3)")
    E("v_lshlrev_b32 v205, 16, v205")
    E("v_lshlrev_b32 v9, 16, v9")
    E("v_lshlrev_b32 v10, 16, v10")
    kgen(E, "K2C", "s28", None, KPB, stamps=1)
    E.label("K2C_LOOP")
    stamp(E, 3)
    for i in range(9): E(f"ds_read_u16 v{40 + i}, v{GA + i}")
    E("v_lshlrev_b32 v11, 4, v0")
    E(f"v_add_u32 v11, {KXB + 32}, v11")
    E("s_lshl_b32 s48, s28, 7")
    E("v_lshl_add_u32 v12, v26, 3, v25")
    E("v_lshlrev_b32 v12, 1, v12")
    E("v_and_b32 v14, 1, v25")
    E("v_xor_b32 v14, 1, v14")
    E(f"v_mul_u32_u24 v14, {KX1 + 2}, v14")
    E(f"s_add_u32 s49, s48, {KXB + 2}")
    E("v_add3_u32 v12, v12, v14, s49")
    E("v_lshlrev_b32 v13, 4, v26")
    E("v_lshlrev_b32 v14, 5, v25")
    E("v_sub_u32 v13, v13, v14")
    E("s_add_u32 s49, s48, s53")
    E(f"s_add_u32 s49, s49, {4064 - 3584}")
    E("v_add_u32 v13, s49, v13")
    E("s_waitcnt lgkmcnt(0)")
    for i in range(4):
        E(f"v_lshl_or_b32 v{32+i}, v{42+2*i}, 16, v{41+2*i}")
        E(f"v_lshl_or_b32 v{36+i}, v{41+2*i}, 16, v{40+2*i}")
    E("ds_write_b128 v11, v[32:35]")
    E(f"ds_write_b128 v11, v[36:39] offset:{KX1}")
    E("s_waitcnt vmcnt(0) lgkmcnt(0)")
    E("s_barrier")
    stamp(E, 4)
    E("s_cmp_lg_u32 s52, 0")
    E("s_cbranch_scc1 K2C_NOKP")
    E("v_lshlrev_b32 v11, 4, v0")
    E(f"v_add_u32 v14, {KPB}, v11")
    E("ds_write_b128 v14, v[206:209]")
    E(f"ds_write_b128 v11, v[210:213] offset:{UR2}")
    E("v_mov_b32 v14, 0"); E("v_mov_b32 v15, 0")
    E("v_lshlrev_b32 v11, 3, v1")
    E(f"ds_write_b64 v11, v[14:15] offset:{UR2 + 4096}")
    E.label("K2C_NOKP")
    AF, BF, AC = 32, 96, 160
    def rd(rho, k):
        for i in range(4): E(f"ds_read_b32 v{AF+32*rho+4*k+i}, v12 offset:{512*k + 64*rho + 4*i}")
        E(f"ds_read_b128 v[{BF+32*rho+4*k}:{BF+32*rho+4*k+3}], v13 offset:{512*(7-k) + 64*rho}")
    def mm(rho, q, p, first):
        c = AC + 4 * (q + p); a = AF + 32 * rho + 4 * q; b = BF + 32 * rho + 4 * p
        E(f"v_mfma_f32_16x16x32_bf16 v[{c}:{c+3}], v[{a}:{a+3}], v[{b}:{b+3}], {'0' if first else f'v[{c}:{c+3}]'}")
    seen = set()
    def stage(rho, k):
        prs = [(q, p) for q in range(k + 1) for p in range(k + 1) if max(q, p) == k and q + p <= 7]
        prs.sort(key=lambda x: (x[0] + x[1] + (8 if x[0] < x[1] else 0)))
        for q, p in prs:
            mm(rho, q, p, (q + p) not in seen); seen.add(q + p)
    seq = [(rho, k) for rho in range(2) for k in range(8)]
    rd(*seq[0]); rd(*seq[1]); rd(*seq[2])
    for i, (rho, k) in enumerate(seq):
        rem = min(2, len(seq) - 1 - i)
        E(f"s_waitcnt lgkmcnt({5 * rem})")
        if i + 3 < len(seq): rd(*seq[i + 3])
        stage(rho, k)
    stamp(E, 5)
    E("s_lshl_b32 s48, s28, 13")
    E("v_add_u32 v11, s48, v4")
    for o in range(8): E(f"ds_write_b128 v11, v[{AC+4*o}:{AC+4*o+3}] offset:{o*1024}")
    E("s_lshl_b32 s48, s28, 11")
    E("v_add_u32 v11, s48, v4")
    E("v_lshlrev_b32 v12, 3, v26")
    E("v_lshl_add_u32 v12, v25, 5, v12")
    E("s_lshl_b32 s48, s28, 10")
    E("s_sub_u32 s49, s53, s48")
    E(f"s_add_u32 s49, s49, {4088 - 512}")
    E("v_sub_u32 v13, s49, v12")
    E("s_lshl_b32 s49, s29, 12")
    E("s_add_u32 s49, s49, s48")
    E(f"s_add_u32 s49, s49, {YT}")
    E("s_waitcnt lgkmcnt(0)")
    E("s_barrier")
    for e in range(2):
        for ww in range(4):
            r = 32 + 16 * e + 4 * ww
            E(f"ds_read_b128 v[{r}:{r+3}], v11 offset:{ww*8192 + e*1024}")
        E(f"ds_read_b64 v[{64+2*e}:{65+2*e}], v13 offset:{512*(1-e)}")
    for e in range(2):
        E(f"s_waitcnt lgkmcnt({5*(1-e)})")
        r = 32 + 16 * e; u = 64 + 2 * e; s = 72 + 8 * e
        for k in (0, 2):
            E(f"v_pk_add_f32 v[{r+k}:{r+k+1}], v[{r+k}:{r+k+1}], v[{r+4+k}:{r+5+k}]")
            E(f"v_pk_add_f32 v[{r+8+k}:{r+9+k}], v[{r+8+k}:{r+9+k}], v[{r+12+k}:{r+13+k}]")
        for k in (0, 2):
            E(f"v_pk_add_f32 v[{r+k}:{r+k+1}], v[{r+k}:{r+k+1}], v[{r+8+k}:{r+9+k}]")
        E(f"v_and_b32 v{s}, 0xffff0000, v{u+1}")
        E(f"v_lshlrev_b32 v{s+1}, 16, v{u+1}")
        E(f"v_and_b32 v{s+2}, 0xffff0000, v{u}")
        E(f"v_lshlrev_b32 v{s+3}, 16, v{u}")
        for k in range(4): E(f"v_mul_f32 v{s+k}, v{s+k}, v10")
        for x in (r, s):
            E(f"v_cvt_pk_bf16_f32 v{s+4}, v{x}, v{x+1}")
            E(f"v_cvt_pk_bf16_f32 v{s+5}, v{x+2}, v{x+3}")
            E(f"v_lshlrev_b32 v{x}, 16, v{s+4}")
            E(f"v_and_b32 v{x+1}, 0xffff0000, v{s+4}")
            E(f"v_lshlrev_b32 v{x+2}, 16, v{s+5}")
            E(f"v_and_b32 v{x+3}, 0xffff0000, v{s+5}")
        E(f"v_pk_add_f32 v[{r}:{r+1}], v[{r}:{r+1}], v[{s}:{s+1}]")
        E(f"v_pk_add_f32 v[{r+2}:{r+3}], v[{r+2}:{r+3}], v[{s+2}:{s+3}]")
        E(f"v_cvt_pk_bf16_f32 v{s+6}, v{r}, v{r+1}")
        E(f"v_cvt_pk_bf16_f32 v{s+7}, v{r+2}, v{r+3}")
    E("s_cmp_lg_u32 s52, 0")
    E("s_cbranch_scc1 K2C_DONE")
    stamp(E, 6)
    E("s_mov_b32 s52, 1")
    E("s_add_u32 s29, s29, 1")
    E(f"s_mov_b32 s53, {UR2}")
    E("v_mov_b32 v10, v205")
    for e in range(2):
        E(f"v_mov_b32 v{214+2*e}, v{78+8*e}")
        E(f"v_mov_b32 v{215+2*e}, v{79+8*e}")
    E("s_barrier")
    E("s_branch K2C_LOOP")
    E.label("K2C_DONE")
    for e in range(2):
        E(f"buffer_store_dwordx2 v[{78+8*e}:{79+8*e}], v12, s[{SWS}:{SWS+3}], s49 offen offset:{512*e}")
    E("s_cmp_lg_u32 s54, 0")
    E("s_cbranch_scc1 K2C_WOF")
    E("s_sub_u32 s49, s49, 4096")
    for e in range(2):
        E(f"buffer_store_dwordx2 v[{214+2*e}:{215+2*e}], v12, s[{SWS}:{SWS+3}], s49 offen offset:{512*e}")
    E("s_branch K2C_FIN")
    E.label("K2C_WOF")
    E("s_sub_u32 s29, s29, 384")
    E("s_cmp_ge_u32 s29, 28")
    E("s_cbranch_scc1 K2C_FIN")
    E("s_mul_i32 s48, s29, 28672")
    E("s_lshl_b32 s49, s28, 10")
    E("s_add_u32 s48, s48, s49")
    E("s_barrier")
    for b in range(7):
        E(f"s_add_u32 m0, s49, {4096*b}")
        E(f"s_add_u32 s50, s48, {4096*b}")
        E(f"buffer_load_dwordx4 v4, s[8:11], s50 offen lds")
    E("v_lshrrev_b32 v10, 2, v1")
    E("v_mul_u32_u24 v10, 896, v10")
    E("v_and_b32 v11, 3, v1")
    E("v_lshl_add_u32 v10, v11, 4, v10")
    E("s_lshr_b32 s50, s28, 1")
    E("s_lshl_b32 s50, s50, 6")
    E("s_and_b32 s51, s28, 1")
    E("s_lshl_b32 s51, s51, 3")
    E("s_add_u32 s50, s50, s51")
    E("v_add_u32 v10, s50, v10")
    E("s_mul_i32 s50, s28, 28672")
    E("s_lshl_b32 s51, s29, 10")
    E("s_add_u32 s50, s50, s51")
    E(f"s_add_u32 s50, s50, {WOF}")
    E("s_waitcnt vmcnt(0)")
    E("s_barrier")
    for b in range(7):
        E(f"ds_read_b64_tr_b16 v[{32+4*b}:{33+4*b}], v10 offset:{128*b}")
        E(f"ds_read_b64_tr_b16 v[{34+4*b}:{35+4*b}], v10 offset:{128*b + 16*896}")
    for b in range(7):
        E(f"s_add_u32 s51, s50, {b*4*28672}")
        E(f"s_waitcnt lgkmcnt({12 - 2*b})")
        E(f"buffer_store_dwordx4 v[{32+4*b}:{35+4*b}], v4, s[{SWS}:{SWS+3}], s51 offen")
    E.label("K2C_FIN")
    stamp(E, 7)
    stamp_flush(E, 8, SWS, 1)
    E("s_endpgm")

def gen_k2(E):
    prologue(E, "k2_kernel")
    E(f"s_cmp_ge_u32 s2, {GRID}")
    E("s_cbranch_scc1 K2_END")
    E("v_and_b32 v1, 63, v0")
    E("v_lshrrev_b32 v2, 6, v0")
    E("v_readfirstlane_b32 s28, v2")
    E("s_cmp_ge_u32 s2, 256")
    E("s_cbranch_scc1 K2_CONV")
    gemm(E)
    E.label("K2_CONV")
    conv(E)
    E.label("K2_END")
    E("s_endpgm")
```

```python
from gen_common import *
VGPR = 320
ACCUM = 256
GRID = 224
LDS = 57344

def gen_k3(E):
    prologue(E, "k3_kernel")
    E(f"s_cmp_ge_u32 s2, {GRID}")
    E("s_cbranch_scc1 K3_END")
    SX, SWS, SO = 8, 12, 16
    load_srds(E, [("u", SX), ("ws", SWS), ("out", SO)])
    E("v_and_b32 v1, 63, v0")
    E("v_lshrrev_b32 v2, 6, v0")
    E("v_readfirstlane_b32 s28, v2")
    stamp(E, 0)
    E("s_and_b32 s48, s2, 7")
    E("s_lshr_b32 s49, s2, 3")
    E("s_lshl_b32 s29, s48, 2")
    E("s_and_b32 s50, s49, 3")
    E("s_add_u32 s29, s29, s50")
    E("s_lshr_b32 s30, s49, 2")
    E("v_lshlrev_b32 v2, 4, v1")
    E("v_add_u32 v3, 4096, v2")
    E("s_mul_i32 s48, s28, 7168")
    E("s_mul_i32 s49, s30, 114688")
    E("s_add_u32 s49, s49, s48")
    for aa in range(4): E(f"s_add_u32 s{32+aa}, s49, {WOF + aa*28672}")
    E("s_lshl_b32 s49, s29, 2")
    for b in range(4):
        E(f"s_xor_b32 s50, s28, {b}")
        E("s_add_u32 s50, s50, s49")
        E("s_mul_i32 s50, s50, 28672")
        E("s_add_u32 s50, s50, s48")
        E(f"s_add_u32 s{36+b}, s50, {HF}")
    E("s_waitcnt lgkmcnt(0)")
    FR = 32
    from gen_k2 import VM
    V = VM(E)
    def ld(k, i):
        j = (i >> 1) + 4 * (i & 1)
        r = FR + 32 * k + 4 * j
        E(f"buffer_load_dwordx4 v[{r}:{r+3}], v{2 + (k >> 2)}, s[{SWS}:{SWS+3}], s{32+j} offen offset:{(k & 3) * 1024}")
        V.issue((k, i >> 1))
    PRE = 3
    for k in range(PRE):
        for i in range(8): ld(k, i)
    E("v_lshrrev_b32 v4, 3, v1")
    E("v_lshlrev_b32 v4, 12, v4")
    E("v_and_b32 v5, 7, v1")
    E("v_lshl_add_u32 v4, v5, 4, v4")
    E("s_lshl_b32 s48, s30, 2")
    E("s_add_u32 s48, s48, s28")
    E("s_lshl_b32 s48, s48, 16")
    E("s_lshl_b32 s49, s29, 7")
    E("s_add_u32 s48, s48, s49")
    E(f"s_add_u32 s48, s48, {YT}")
    E("s_add_u32 s49, s48, 32768")
    E("s_lshl_b32 s50, s28, 11")
    E("s_add_u32 m0, s50, 49152")
    E(f"buffer_load_dwordx4 v4, s[{SWS}:{SWS+3}], s48 offen lds")
    V.issue("x")
    E("s_add_u32 m0, s50, 50176")
    E(f"buffer_load_dwordx4 v4, s[{SWS}:{SWS+3}], s49 offen lds")
    V.issue("x")
    E("v_and_b32 v5, 15, v1")
    E("v_lshrrev_b32 v6, 4, v1")
    E("v_mul_u32_u24 v7, 896, v5")
    E("v_lshl_add_u32 v7, v6, 4, v7")
    E("s_lshl_b32 s48, s29, 2")
    E("s_add_u32 s48, s48, s28")
    E("s_mul_i32 s48, s48, 14336")
    E("s_lshl_b32 s49, s30, 7")
    E("s_add_u32 s40, s48, s49")
    E(f"buffer_load_dwordx4 v[16:19], v7, s[{SX}:{SX+3}], s40 offen")
    V.issue("x")
    E(f"buffer_load_dwordx4 v[20:23], v7, s[{SX}:{SX+3}], s40 offen offset:64")
    V.issue("x")
    E("s_mul_i32 s48, s28, 12288")
    E("v_add_u32 v8, s48, v2")
    for k in range(1, 4):
        E(f"s_xor_b32 s49, s28, {k}")
        E("s_mul_i32 s49, s49, 12288")
        E(f"v_add_u32 v{8+k}, s49, v2")
    E("v_bfe_u32 v12, v1, 2, 2")
    E("v_lshl_add_u32 v12, v6, 3, v12")
    E("v_lshlrev_b32 v12, 7, v12")
    E("v_and_b32 v13, 3, v1")
    E("v_lshl_add_u32 v12, v13, 3, v12")
    E("s_lshl_b32 s49, s28, 5")
    E("v_add_u32 v12, s49, v12")
    for k in range(7):
        for st in range(4):
            V.wait((k, st))
            if k == 0 and st == 0: stamp(E, 1)
            for aa in range(st + 1):
                for b in range(st + 1):
                    if max(aa, b) != st: continue
                    c = 16 * b + 4 * aa; a = FR + 32 * k + 4 * aa; bb = FR + 32 * k + 16 + 4 * b
                    E(f"v_mfma_f32_16x16x32_bf16 a[{c}:{c+3}], v[{a}:{a+3}], v[{bb}:{bb+3}], {'0' if k == 0 else f'a[{c}:{c+3}]'}")
            if k + PRE < 7: ld(k + PRE, 2 * st); ld(k + PRE, 2 * st + 1)
    stamp(E, 2)
    for b in range(1, 4):
        for aa in range(4):
            c = 16 * b + 4 * aa
            E(f"ds_write_b128 v8, a[{c}:{c+3}] offset:{((b-1)*4+aa)*1024}")
    for i in range(16): E(f"v_accvgpr_read_b32 v{32+i}, a{i}")
    E("s_waitcnt vmcnt(0) lgkmcnt(0)")
    E("s_barrier")
    stamp(E, 3)
    for hh in range(2):
        for h2 in range(2):
            E(f"ds_read_b64_tr_b16 v[{24+4*hh+2*h2}:{25+4*hh+2*h2}], v12 offset:{49152 + (32*hh+4*h2)*128}")
    for aa in range(4):
        for k in range(1, 4):
            r = 48 + 16 * (k - 1) + 4 * aa
            E(f"ds_read_b128 v[{r}:{r+3}], v{8+k} offset:{((k-1)*4+aa)*1024}")
    E("s_waitcnt lgkmcnt(12)")
    for i in range(8):
        E(f"v_lshlrev_b32 v{96+2*i}, 16, v{16+i}")
        E(f"v_and_b32 v{97+2*i}, 0xffff0000, v{16+i}")
        E(f"v_lshlrev_b32 v{112+2*i}, 16, v{24+i}")
        E(f"v_and_b32 v{113+2*i}, 0xffff0000, v{24+i}")
    for i in range(8): E(f"v_pk_add_f32 v[{96+2*i}:{97+2*i}], v[{96+2*i}:{97+2*i}], v[{112+2*i}:{113+2*i}]")
    for i in range(8): E(f"v_cvt_pk_bf16_f32 v{16+i}, v{96+2*i}, v{97+2*i}")
    for i in range(8):
        E(f"v_lshlrev_b32 v{96+2*i}, 16, v{16+i}")
        E(f"v_and_b32 v{97+2*i}, 0xffff0000, v{16+i}")
    for aa in range(4):
        E(f"s_waitcnt lgkmcnt({9 - 3*aa})")
        for p in (0, 2):
            c = 32 + 4 * aa + p
            E(f"v_pk_add_f32 v[{c}:{c+1}], v[{c}:{c+1}], v[{c+16}:{c+17}]")
            E(f"v_pk_add_f32 v[{c+32}:{c+33}], v[{c+32}:{c+33}], v[{c+48}:{c+49}]")
        for p in (0, 2):
            c = 32 + 4 * aa + p
            E(f"v_pk_add_f32 v[{c}:{c+1}], v[{c}:{c+1}], v[{c+32}:{c+33}]")
        for p in (0, 2):
            c = 32 + 4 * aa + p
            E(f"v_cvt_pk_bf16_f32 v{c+16}, v{c}, v{c+1}")
            E(f"v_lshlrev_b32 v{c}, 16, v{c+16}")
            E(f"v_and_b32 v{c+1}, 0xffff0000, v{c+16}")
            E(f"v_pk_add_f32 v[{c}:{c+1}], v[{c}:{c+1}], v[{c+64}:{c+65}]")
            E(f"v_cvt_pk_bf16_f32 v{128 + 2*aa + p//2}, v{c}, v{c+1}")
        if aa & 1:
            E(f"buffer_store_dwordx4 v[{128 + 4*(aa>>1)}:{131 + 4*(aa>>1)}], v7, s[{SO}:{SO+3}], s40 offen offset:{64*(aa>>1)}")
    stamp(E, 4)
    stamp_flush(E, 5, SWS, 2)
    E.label("K3_END")
    E("s_endpgm")
```

```python
import sys
from gen_common import *
import gen_k1
HEADER = open("parallel_sum__ssm_conv_s4d__mixer_gmlp__prompt.s.ref").read().split("; Override launch")[0]
def build(which=("k1", "k2")):
    launches = []; body = ""; desc = ""
    if "k1" in which:
        E = Asm(); gen_k1.gen_k1(E); body += E.finish(); desc += kernel_desc("k1_kernel", gen_k1.VGPR)
        launches.append(f"; @launch kernel=k1_kernel grid=(256,1,1) block=(512,1,1) lds={gen_k1.LDS}")
    if "k2" in which:
        import gen_k2
        E = Asm(); gen_k2.gen_k2(E); body += E.finish(); desc += kernel_desc("k2_kernel", gen_k2.VGPR)
        launches.append(f"; @launch kernel=k2_kernel grid=({gen_k2.GRID},1,1) block=(256,1,1) lds={gen_k2.LDS}")
    if "k3" in which:
        import gen_k3
        E = Asm(); gen_k3.gen_k3(E); body += E.finish(); desc += kernel_desc("k3_kernel", gen_k3.VGPR, accum=gen_k3.ACCUM)
        launches.append(f"; @launch kernel=k3_kernel grid=({gen_k3.GRID},1,1) block=(256,1,1) lds={gen_k3.LDS}")
    WT = os.environ.get("WT", "sc1")
    if WT:
        import re
        body = "\n".join((l + " " + WT) if (l.strip().startswith("buffer_store_dwordx") and "sc1" not in l and "nosc" not in l) else l for l in body.split("\n"))
    return HEADER + "\n".join(launches) + '\n.amdgcn_target "amdgcn-amd-amdhsa--gfx950"\n.text\n' + body + desc
if __name__ == "__main__":
    out = sys.argv[1]; which = sys.argv[2].split(",") if len(sys.argv) > 2 else ("k1", "k2")
    open(out, "w").write(build(which))
```

```python
from asmlib import *
Z2F = 0x0000000
Z1F = 0x0400000
HF  = 0x0800000
XNT = 0x0C00000
YT  = 0x0E00000
WOF = 0x1000000
RST = 0x1100000
CSUM = 0x1110000
PST = 0x1200000
KPG = 0x1400000
AFLAG = 0x1120000
TAGW = 0x1130000
FLG = 0x1140000
WS_BYTES = 0x10000000
KA = dict(u=0, lar=8, aim=16, cre=24, cim=32, ldt=40, dsk=48, bx=56, win=64, wsp=72, bsp=80, wout=88, out=96, dbg=104, ws=112)
SZ = dict(u=1835008, lar=229376, aim=229376, cre=229376, cim=229376, ldt=896, dsk=896, win=1605632, wsp=8388608,
          bsp=4096, wout=802816, out=1835008, dbg=256, ws=WS_BYTES)

def f32hex(x):
    import struct
    return "0x%08x" % struct.unpack("<I", struct.pack("<f", x))[0]

def load_srds(E, items):
    for nm, b in items:
        E(f"s_load_dwordx2 s[{b}:{b+1}], s[0:1], {KA[nm]}")
    for nm, b in items:
        E(f"s_mov_b32 s{b+2}, {SZ[nm]}")
        E(f"s_mov_b32 s{b+3}, 0x00020000")

def prologue(E, name):
    E(f".globl {name}")
    E(".p2align 8")
    E(f".type {name},@function")
    E.label(name)

def bf16r(E, dst, src, tmp=None):
    E(f"v_cvt_pk_bf16_f32 {dst}, {src}, {src}")
    E(f"v_lshlrev_b32 {dst}, 16, {dst}")

GELU_K1 = -2.0 * 0.7978845608028654 * 1.4426950408889634
GELU_K2 = GELU_K1 * 0.044715

import os
XS = int(os.environ.get("XS", "4096"))
XNOSC = " ; nosc" if os.environ.get("XNOSC", "0") == "1" else ""
STAMPS = os.environ.get("STAMPS", "0") == "1"
STAMP_OFF = 0x2000000
def stamp(E, idx, base=60):
    if not STAMPS: return
    E(f"s_memtime s[{base+2*idx}:{base+2*idx+1}]")
    if idx == 0: E("s_memrealtime s[98:99]")
def stamp_flush(E, n, sws, kidx, base=60, wave_sreg="s28"):
    if not STAMPS: return
    E(f"s_memrealtime s[{base+2*n}:{base+2*n+1}]")
    E("s_waitcnt lgkmcnt(0)")
    E(f"s_lshl_b32 s58, s2, 3")
    E(f"s_add_u32 s58, s58, {wave_sreg}")
    E(f"s_lshl_b32 s58, s58, 7")
    E(f"s_add_u32 s58, s58, {STAMP_OFF + kidx*0x100000}")
    E("s_mov_b64 exec, 1")
    E("v_mov_b32 v1, 0")
    for i in range(n + 1):
        E(f"v_mov_b32 v0, s{base+2*i}")
        E(f"buffer_store_dword v0, v1, s[{sws}:{sws+3}], s58 offen offset:{4*i}")
    E(f"v_mov_b32 v0, s98")
    E(f"buffer_store_dword v0, v1, s[{sws}:{sws+3}], s58 offen offset:{4*(n+1)}")
    E("s_mov_b64 exec, -1")

IPF = os.environ.get("IPF", "0") == "1"
def code_touch(E, lab, sidx, nl, stride_lines):
    if not IPF: return
    E("s_getpc_b64 s[96:97]")
    E(f"s_lshl_b32 s59, {sidx}, 7")
    E("s_add_u32 s96, s96, s59")
    E("s_addc_u32 s97, s97, 0")
    for k in range(nl): E(f"s_load_dword s59, s[96:97], {k * stride_lines * 128}")
```

```python
from gen_common import *
from gen_k2 import VM, kgen, TABW
VGPR = 256
LDS = 163840
SL = 24576
W1B = 98304
SCR = 155648
PAIR = 32768
CSA = 159744

def gen_k1(E):
    prologue(E, "k1_kernel")
    SX, SW, SWS, SDB, SWO = 8, 12, 16, 20, 24
    E("s_cmp_ge_u32 s2, 256")
    E("s_cbranch_scc1 K1_END")
    load_srds(E, [("u", SX), ("win", SW), ("ws", SWS), ("dbg", SDB), ("wout", SWO), ("wsp", 4)])
    E("v_and_b32 v1, 63, v0")
    E("v_lshrrev_b32 v2, 6, v0")
    E("v_readfirstlane_b32 s28, v2")
    stamp(E, 0)
    E("s_cmp_ge_u32 s2, 224")
    E("s_cbranch_scc1 K1_AUX")
    E("s_and_b32 s33, s2, 7")
    E("s_lshr_b32 s34, s2, 3")
    E("s_lshr_b32 s29, s33, 1")
    E("s_lshl_b32 s29, s29, 2")
    E("s_and_b32 s35, s34, 3")
    E("s_add_u32 s29, s29, s35")
    E("s_and_b32 s30, s33, 1")
    E("s_mul_i32 s30, s30, 7")
    E("s_lshr_b32 s35, s34, 2")
    E("s_add_u32 s30, s30, s35")
    E("s_and_b32 s31, s28, 3")
    E("s_lshr_b32 s32, s28, 2")
    E("v_lshrrev_b32 v6, 3, v1")
    E("v_and_b32 v7, 7, v1")
    E("v_lshrrev_b32 v8, 1, v6")
    E("v_xor_b32 v9, v7, v8")
    E("v_xor_b32 v10, 4, v9")
    E("s_lshl_b32 s33, s29, 7")
    E("s_lshl_b32 s34, s28, 4")
    E("s_add_u32 s34, s34, s33")
    E("v_add_u32 v11, s34, v6")
    E("v_mul_u32_u24 v11, 896, v11")
    E("v_lshl_add_u32 v3, v9, 4, v11")
    E("v_lshl_add_u32 v4, v10, 4, v11")
    E("v_add_u32 v4, 7168, v4")
    E("v_and_b32 v9, 1, v8")
    E("v_lshlrev_b32 v9, 2, v9")
    E("v_xor_b32 v9, v7, v9")
    E("s_lshl_b32 s34, s28, 3")
    E("v_add_u32 v11, s34, v6")
    E("v_mul_u32_u24 v11, 3584, v11")
    E("v_lshl_add_u32 v5, v9, 4, v11")
    E("s_lshl_b32 s34, s30, 7")
    E("v_add_u32 v5, s34, v5")
    E("s_lshl_b32 s36, s28, 11")
    E("s_lshl_b32 s37, s28, 10")
    E("s_waitcnt lgkmcnt(0)")
    V = VM(E)
    E("v_mov_b32 v30, 0")
    E("s_lshl_b32 s49, s29, 7")
    E(f"s_add_u32 s49, s49, {TAGW}")
    E(f"buffer_load_dword v31, v30, s[{SWS}:{SWS+3}], s49 offen")
    def issue(c, parts=(0, 1, 2)):
        slot = (c % 4) * SL
        if 0 in parts:
            E(f"s_add_u32 m0, s36, {slot}")
            E(f"s_mov_b32 s40, {c*128}")
            E(f"buffer_load_dwordx4 v3, s[{SX}:{SX+3}], s40 offen lds")
        if 1 in parts:
            E(f"s_add_u32 m0, s36, {slot+1024}")
            E(f"s_mov_b32 s41, {c*229376+1792}")
            E(f"buffer_load_dwordx4 v4, s[{SX}:{SX+3}], s40 offen lds")
        if 2 in parts:
            E(f"s_add_u32 m0, s37, {slot+16384}")
            E("s_nop 0")
            E(f"buffer_load_dwordx4 v5, s[{SW}:{SW+3}], s41 offen lds")
        for _ in parts: V.issue(("S", c))
    def issue_w1(c):
        E(f"s_add_u32 m0, s37, {W1B + c*8192}")
        E(f"s_mov_b32 s42, {c*229376}")
        E(f"buffer_load_dwordx4 v5, s[{SW}:{SW+3}], s42 offen lds")
        V.issue("W1")
    for c in range(4): issue(c)
    E("v_and_b32 v6, 31, v1")
    E("v_lshrrev_b32 v7, 5, v1")
    E("v_bfe_u32 v8, v6, 1, 3")
    E("v_xor_b32 v8, v8, v7")
    E("s_lshl_b32 s34, s31, 5")
    E("v_add_u32 v9, s34, v6")
    E("v_lshlrev_b32 v9, 7, v9")
    E("v_lshl_add_u32 v12, v8, 4, v9")
    E("s_lshl_b32 s45, s32, 1")
    E("s_xor_b32 s45, s45, s31")
    E("s_lshl_b32 s34, s45, 5")
    E("v_xor_b32 v12, s34, v12")
    for j in range(1, 4): E(f"v_xor_b32 v{12+j}, {32*j}, v12")
    for j in range(4): E(f"v_add_u32 v{16+j}, {2*SL}, v{12+j}")
    E("v_bfe_u32 v8, v1, 2, 2")
    E("v_lshl_add_u32 v9, v7, 3, v8")
    E("v_lshlrev_b32 v9, 7, v9")
    E("v_bfe_u32 v10, v1, 4, 1")
    E("v_lshlrev_b32 v10, 1, v10")
    E("v_bfe_u32 v11, v1, 1, 1")
    E("v_add_u32 v10, v10, v11")
    E("s_lshl_b32 s34, s32, 2")
    E("v_add_u32 v10, s34, v10")
    E("v_lshrrev_b32 v8, 1, v8")
    E("v_lshlrev_b32 v8, 2, v8")
    E("v_xor_b32 v10, v10, v8")
    E("v_lshl_add_u32 v9, v10, 4, v9")
    E("v_and_b32 v11, 1, v1")
    E("v_lshl_add_u32 v20, v11, 3, v9")
    E(f"v_add_u32 v25, {W1B}, v20")
    E("v_add_u32 v20, 16384, v20")
    E(f"v_add_u32 v21, {2*SL}, v20")
    E("s_lshl_b32 s43, s31, 1")
    E("s_add_u32 s43, s43, s32")
    E("v_bfe_u32 v8, v1, 2, 2")
    E("v_bfe_u32 v10, v1, 4, 1")
    E("v_lshl_add_u32 v8, v10, 3, v8")
    E("s_and_b32 s34, s30, 1")
    E("s_lshl_b32 s34, s34, 2")
    E("v_lshrrev_b32 v10, 5, v1")
    E("v_lshlrev_b32 v10, 1, v10")
    E("v_bfe_u32 v11, v1, 1, 1")
    E("v_add3_u32 v10, v10, v11, s34")
    E("v_lshrrev_b32 v11, 1, v8")
    E("v_xor_b32 v10, v10, v11")
    E("v_lshlrev_b32 v8, 7, v8")
    E("v_lshl_add_u32 v8, v10, 4, v8")
    E("v_and_b32 v11, 1, v1")
    E("v_lshl_add_u32 v8, v11, 3, v8")
    E("s_lshr_b32 s38, s30, 1")
    E("s_and_b32 s34, s38, 3")
    E(f"s_mul_i32 s34, s34, {SL}")
    E("s_lshl_b32 s35, s43, 11")
    E("s_add_u32 s34, s34, s35")
    E("v_xor_b32 v23, 32, v8")
    E("v_add_u32 v22, s34, v8")
    E("v_add_u32 v23, s34, v23")
    E("v_add_u32 v23, 512, v23")
    E("v_lshlrev_b32 v24, 4, v1")
    E("v_mov_b32 v30, 0")
    E("s_mov_b32 s44, 0x3f803f80")
    ACC2, ACC1, XF, WFR = 32, 48, 64, 176
    SSUM, SSQ, SC2, SC1 = 208, 212, 216, 220
    XG = 26
    for r in range(208, 224): E(f"v_mov_b32 v{r}, 0")
    E("v_lshrrev_b32 v6, 2, v1")
    E("v_lshrrev_b32 v7, 4, v1")
    E("v_xor_b32 v6, v6, v7")
    E("v_and_b32 v6, 1, v6")
    E("v_add_u32 v6, -1, v6")
    for r in range(232, 236): E(f"v_and_b32 v{r}, s44, v6")
    E(f"v_mov_b32 v242, {f32hex(GELU_K1)}")
    E(f"v_mov_b32 v243, {f32hex(GELU_K2)}")
    E("v_mov_b32 v244, 1.0")
    E("v_mov_b32 v245, 1.0")
    E("s_lshl_b32 s34, s28, 9")
    E(f"s_add_u32 s34, s34, {SCR}")
    E("v_and_b32 v6, 31, v1")
    E("v_lshl_add_u32 v246, v6, 3, s34")
    E("v_bfe_u32 v7, v1, 4, 1")
    E("s_lshl_b32 s35, s32, 7")
    E("s_add_u32 s34, s34, s35")
    E("v_lshl_add_u32 v249, v7, 6, s34")
    E("s_lshl_b32 s34, s31, 8")
    E(f"s_add_u32 s34, s34, {PAIR}")
    E("v_lshl_add_u32 v250, v6, 3, s34")
    E("s_lshl_b32 s34, s32, 9")
    E(f"s_add_u32 s34, s34, {CSA}")
    E("v_and_b32 v6, 31, v1")
    E("v_lshl_add_u32 v255, v6, 4, s34")
    E("s_lshl_b32 s35, s31, 2")
    E("v_add_u32 v254, s35, v255")
    E("s_lshl_b32 s34, s31, 9")
    E(f"s_add_u32 s34, s34, {CSA + 2048}")
    E("v_lshl_add_u32 v247, v6, 4, s34")
    E("s_lshl_b32 s35, s32, 3")
    E("v_add_u32 v251, s35, v247")
    E("s_lshl_b32 s34, s28, 9")
    E(f"s_add_u32 s34, s34, {SCR + 256}")
    E("v_lshl_add_u32 v252, v6, 2, s34")
    E("v_lshrrev_b32 v7, 5, v1")
    E("v_lshl_add_u32 v253, v7, 4, s34")
    for j in range(4):
        E(f"s_xor_b32 s34, s45, {j}")
        E("s_lshl_b32 s34, s34, 11")
        E(f"v_add_u32 v{6+j}, s34, v20")
        E(f"v_add_u32 v{236+j}, s34, v21")
    def reads(c):
        slot = c % 4; hi = slot >= 2; so = (slot & 1) * SL
        for j in range(4):
            a = (16 if hi else 12) + j; b = (236 if hi else 6) + j; x = XF + 16 * c + 4 * j; f = WFR + 16 * (c & 1) + 4 * j
            E(f"ds_read_b128 v[{x}:{x+3}], v{a} offset:{so}")
            for h in range(2):
                E(f"ds_read_b64_tr_b16 v[{f+2*h}:{f+1+2*h}], v{b} offset:{so + h*512}")
    def mm(c, j):
        x = XF + 16 * c + 4 * j; f = WFR + 16 * (c & 1) + 4 * j
        c2 = "0" if (c == 0 and j == 0) else f"v[{ACC2}:{ACC2+15}]"
        E(f"v_mfma_f32_32x32x16_bf16 v[{ACC2}:{ACC2+15}], v[{f}:{f+3}], v[{x}:{x+3}], {c2}")
        xs = XF + 16 * c + 4 * (j >> 1) + 2 * (j & 1)
        for k in range(2):
            E(f"v_lshlrev_b32 v{224+2*k}, 16, v{xs+k}")
            E(f"v_and_b32 v{225+2*k}, 0xffff0000, v{xs+k}")
        if j < 2: E(f"v_mfma_f32_16x16x32_bf16 v[{SSUM}:{SSUM+3}], v[232:235], v[{x}:{x+3}], v[{SSUM}:{SSUM+3}]")
        if j == 2:
            f0 = WFR + 16 * (c & 1)
            E(f"v_mfma_f32_16x16x32_bf16 v[{SC2}:{SC2+3}], v[232:235], v[{f0}:{f0+3}], v[{SC2}:{SC2+3}]")
        for k in range(4): E(f"v_fmac_f32 v{SSQ+k}, v{224+k}, v{224+k}")
    w1n = [0]
    for i in range(8):
        if i < 7:
            V.wait(("S", i))
            E("s_waitcnt lgkmcnt(0)")
            E("s_barrier")
            if i in (0, 3, 6): stamp(E, {0: 1, 3: 2, 6: 3}[i])
            E(f"s_cmp_lg_u32 s38, {i}")
            E(f"s_cbranch_scc1 K1_NOGRAB{i}")
            E(f"ds_read_b64_tr_b16 v[{XG}:{XG+1}], v22")
            E(f"ds_read_b64_tr_b16 v[{XG+2}:{XG+3}], v23")
            E.label(f"K1_NOGRAB{i}")
            reads(i)
        else:
            E("s_waitcnt lgkmcnt(0)")
        if i == 0: continue
        for j in range(4):
            mm(i - 1, j)
            if i <= 3 and j < 3: issue(i + 3, (j,))
            if i in (4, 5) and w1n[0] < 7: issue_w1(w1n[0]); w1n[0] += 1
            if i == 5 and j == 3:
                E("s_lshl_b32 s34, s2, 3")
                E("s_add_u32 s34, s34, s28")
                E("s_mul_i32 s34, s34, 4736")
                E("v_min_u32 v4, 36, v1")
                E("v_lshlrev_b32 v4, 7, v4")
                E("buffer_load_dword v4, v4, s[4:7], s34 offen")
                V.issue("pf")
    stamp(E, 4)
    def red4(r):
        E(f"v_add_f32 v{r}, v{r}, v{r+1}")
        E(f"v_add_f32 v{r+2}, v{r+2}, v{r+3}")
        E(f"v_add_f32 v{r}, v{r}, v{r+2}")
        E(f"v_mov_b32 v{r+1}, v{r}")
        E(f"v_permlane32_swap_b32 v{r}, v{r+1}")
        E(f"v_add_f32 v{r}, v{r}, v{r+1}")
    red4(SSQ)
    E(f"v_mov_b32 v{SSUM+1}, v{SSQ}")
    E(f"ds_write_b64 v251, v[{SSUM}:{SSUM+1}]")
    E(f"ds_write_b32 v254, v{SC2} offset:1024")
    for j in range(4): E(f"v_add_u32 v{6+j}, {W1B - 16384}, v{6+j}")
    E("s_waitcnt lgkmcnt(0)")
    E("s_barrier")
    CS, T = 176, 192
    E("ds_read_b128 v[224:227], v255 offset:1024")
    E("ds_read_b128 v[228:231], v247")
    E("s_waitcnt lgkmcnt(1)")
    E("v_add_f32 v224, v224, v225")
    E("v_add_f32 v226, v226, v227")
    E("v_add_f32 v224, v224, v226")
    E("ds_write_b32 v252, v224")
    for o in range(4): E(f"ds_read_b128 v[{CS+4*o}:{CS+4*o+3}], v253 offset:{32*o}")
    E("s_waitcnt lgkmcnt(5)")
    E("v_add_f32 v240, v228, v230")
    E("v_add_f32 v241, v229, v231")
    def ln_stats(m, q, n):
        E(f"v_mul_f32 v{m}, {f32hex(1.0/n)}, v{m}")
        E(f"v_mul_f32 v{q}, {f32hex(1.0/n)}, v{q}")
        E(f"v_fma_f32 v{q}, -v{m}, v{m}, v{q}")
        E(f"v_max_f32 v{q}, 0, v{q}")
        bf16r(E, f"v{m}", f"v{m}"); bf16r(E, f"v{q}", f"v{q}")
        E(f"v_add_f32 v{q}, {f32hex(1e-5)}, v{q}")
        bf16r(E, f"v{q}", f"v{q}")
        E(f"v_sqrt_f32 v{q}, v{q}")
        bf16r(E, f"v{q}", f"v{q}")
        E(f"v_rcp_f32 v{q}, v{q}")
    ln_stats(240, 241, 448)
    E("ds_write_b64 v246, v[240:241]")
    def gelu_block(acc, CS=176):
        P = lambda r: f"v[{r}:{r+1}]"
        idx = range(0, 16, 2)
        for i in idx: E(f"v_pk_fma_f32 {P(acc+i)}, {P(CS+i)}, v[240:241], {P(acc+i)} op_sel:[0,0,0] op_sel_hi:[1,0,1] neg_lo:[1,0,0] neg_hi:[1,0,0]")
        for i in idx: E(f"v_pk_mul_f32 {P(acc+i)}, {P(acc+i)}, v[240:241] op_sel:[0,1] op_sel_hi:[1,1]")
        for i in idx: E(f"v_pk_mul_f32 {P(T+i)}, {P(acc+i)}, {P(acc+i)}")
        for i in idx: E(f"v_pk_fma_f32 {P(T+i)}, {P(T+i)}, v[242:243], v[242:243] op_sel:[0,1,0] op_sel_hi:[1,1,0]")
        for i in idx: E(f"v_pk_mul_f32 {P(T+i)}, {P(T+i)}, {P(acc+i)}")
        for i in range(16): E(f"v_exp_f32 v{T+i}, v{T+i}")
        for i in idx: E(f"v_pk_add_f32 {P(T+i)}, {P(T+i)}, v[244:245]")
        for i in range(16): E(f"v_rcp_f32 v{T+i}, v{T+i}")
        for i in idx: E(f"v_pk_mul_f32 {P(acc+i)}, {P(acc+i)}, {P(T+i)}")
    E("s_waitcnt lgkmcnt(1)")
    gelu_block(ACC2)
    E(f"v_pk_add_f32 v[224:225], v[{ACC2}:{ACC2+1}], v[{ACC2+2}:{ACC2+3}]")
    E(f"v_pk_mul_f32 v[226:227], v[{ACC2}:{ACC2+1}], v[{ACC2}:{ACC2+1}]")
    E(f"v_pk_add_f32 v[228:229], v[{ACC2+4}:{ACC2+5}], v[{ACC2+6}:{ACC2+7}]")
    E(f"v_pk_mul_f32 v[230:231], v[{ACC2+2}:{ACC2+3}], v[{ACC2+2}:{ACC2+3}]")
    for i in range(4, 16, 2):
        q = 226 + 4 * ((i >> 1) & 1)
        E(f"v_pk_fma_f32 v[{q}:{q+1}], v[{ACC2+i}:{ACC2+i+1}], v[{ACC2+i}:{ACC2+i+1}], v[{q}:{q+1}]")
        if i >= 8:
            sr = 224 + 4 * ((i >> 1) & 1)
            E(f"v_pk_add_f32 v[{sr}:{sr+1}], v[{sr}:{sr+1}], v[{ACC2+i}:{ACC2+i+1}]")
    E("v_pk_add_f32 v[224:225], v[224:225], v[228:229]")
    E("v_pk_add_f32 v[226:227], v[226:227], v[230:231]")
    E("v_add_f32 v224, v224, v225")
    E("v_add_f32 v225, v226, v227")
    E("v_mov_b32 v226, v224")
    E("v_mov_b32 v227, v225")
    E("v_permlane32_swap_b32 v224, v226")
    E("v_permlane32_swap_b32 v225, v227")
    E("v_pk_add_f32 v[224:225], v[224:225], v[226:227]")
    E("s_cmp_eq_u32 s32, 0")
    E("s_cbranch_scc1 K1_NOPW")
    E("ds_write_b64 v250, v[224:225]")
    E.label("K1_NOPW")
    V.wait("W1")
    E("v_add_u32 v31, 1, v31")
    E("s_waitcnt lgkmcnt(0)")
    stamp(E, 5)
    E("s_barrier")
    E("ds_read_b64 v[228:229], v250")
    E("s_lshl_b32 s34, s29, 2")
    E("s_add_u32 s39, s34, s31")
    E("s_mul_i32 s34, s39, 7168")
    E(f"s_add_u32 s47, s34, {PST}")
    E("s_lshl_b32 s35, s30, 1")
    E("s_add_u32 s48, s35, s32")
    E("s_lshl_b32 s35, s30, 9")
    E("s_add_u32 s34, s47, s35")
    order = [4 * c for c in range(7)] + [k for k in range(28) if k % 4]
    def w1reads(i):
        f = WFR + 4 * (i % 8); ks = order[i]
        for h in range(2):
            E(f"ds_read_b64_tr_b16 v[{f+2*h}:{f+1+2*h}], v{6 + (ks & 3)} offset:{(ks >> 2)*8192 + h*512}")
    for ks in range(6): w1reads(ks)
    E("s_cmp_lg_u32 s32, 0")
    E("s_cbranch_scc1 K1_NOPUB")
    E("s_waitcnt lgkmcnt(12)")
    E("v_add_f32 v224, v224, v228")
    E("v_add_f32 v226, v225, v229")
    E("v_mov_b32 v225, v31")
    E("v_mov_b32 v227, v31")
    E("s_mov_b32 exec_hi, 0")
    E(f"buffer_store_dwordx4 v[224:227], v24, s[{SWS}:{SWS+3}], s34 offen sc1")
    E("s_mov_b64 exec, -1")
    E.label("K1_NOPUB")
    stamp(E, 6)
    lq = [("w", k) for k in range(6) for _ in range(2)]
    def lwait(tag):
        idx = max(i for i, t in enumerate(lq) if t == tag)
        E(f"s_waitcnt lgkmcnt({min(15, len(lq) - 1 - idx)})")
    XW = 224
    for ks in range(28):
        lwait(("w", ks))
        x = XF + 4 * order[ks]; f = WFR + 4 * (ks % 8)
        c1 = "0" if ks == 0 else f"v[{ACC1}:{ACC1+15}]"
        E(f"v_mfma_f32_32x32x16_bf16 v[{ACC1}:{ACC1+15}], v[{f}:{f+3}], v[{x}:{x+3}], {c1}")
        if ks + 6 < 28: w1reads(ks + 6); lq += [("w", ks + 6)] * 2
        if ks < 7:
            E(f"v_mfma_f32_16x16x32_bf16 v[{SC1}:{SC1+3}], v[232:235], v[{f}:{f+3}], v[{SC1}:{SC1+3}]")
        if ks == 9:
            E(f"ds_write_b32 v254, v{SC1}")
            lq.append("a")
        if ks == 18:
            lwait("a")
            E("s_barrier")
            E("ds_read_b128 v[224:227], v255")
            lq.append("b")
        if ks == 22:
            lwait("b")
            E("v_add_f32 v224, v224, v225")
            E("v_add_f32 v226, v226, v227")
            E("v_add_f32 v224, v224, v226")
            E("ds_write_b32 v252, v224")
            for o in range(4): E(f"ds_read_b128 v[{208+4*o}:{211+4*o}], v253 offset:{32*o}")
            lq += ["c"] * 5
    for o in range(4): E(f"ds_read_b128 v[{148+4*o}:{151+4*o}], v249 offset:{16*o}")
    E("s_mov_b32 s46, 0")
    E("s_add_u32 s53, s47, 4096")
    GR = 112
    def ld_gran():
        for i in range(7):
            E(f"buffer_load_dwordx4 v[{GR+4*i}:{GR+4*i+3}], v24, s[{SWS}:{SWS+3}], s{47 if i < 4 else 53} offen offset:{1024*(i%4)} sc1")
    stamp(E, 7)
    ld_gran()
    E("s_waitcnt lgkmcnt(4)")
    gelu_block(ACC1, 208)
    for o in range(4):
        d = 64 + 4 * (o & 1) + 2 * (o >> 1)
        E(f"v_cvt_pk_bf16_f32 v{d}, v{ACC1+4*o}, v{ACC1+4*o+1}")
        E(f"v_cvt_pk_bf16_f32 v{d+1}, v{ACC1+4*o+2}, v{ACC1+4*o+3}")
    E("v_bfe_u32 v2, v1, 4, 1")
    E("v_mul_u32_u24 v2, 28672, v2")
    E("v_lshrrev_b32 v7, 5, v1")
    E("v_lshl_add_u32 v2, v7, 8, v2")
    E("v_and_b32 v7, 15, v1")
    E("v_lshl_add_u32 v2, v7, 4, v2")
    E("s_mul_i32 s34, s39, 57344")
    E("s_lshl_b32 s35, s48, 10")
    E("s_add_u32 s34, s34, s35")
    E(f"s_add_u32 s54, s34, {Z1F}")
    E("s_waitcnt lgkmcnt(0)")
    for i in range(8):
        src = XG + i // 2
        if i & 1: E(f"v_and_b32 v{72+i}, 0xffff0000, v{src}")
        else: E(f"v_lshlrev_b32 v{72+i}, 16, v{src}")
    for i in range(8): E(f"v_sub_f32 v{72+i}, v{72+i}, v{148+2*i}")
    for i in range(0, 8, 2): E(f"v_cvt_pk_bf16_f32 v{84+i//2}, v{72+i}, v{73+i}")
    for i in range(8):
        src = 84 + i // 2
        if i & 1: E(f"v_and_b32 v{72+i}, 0xffff0000, v{src}")
        else: E(f"v_lshlrev_b32 v{72+i}, 16, v{src}")
    for i in range(8): E(f"v_mul_f32 v{72+i}, v{72+i}, v{149+2*i}")
    for i in range(4): E(f"v_cvt_pk_bf16_f32 v{84+i}, v{79-2*i}, v{78-2*i}")
    E("v_lshrrev_b32 v3, 5, v1")
    E("v_and_b32 v7, 15, v1")
    E("v_lshl_add_u32 v3, v3, 4, v7")
    E("v_lshlrev_b32 v3, 12, v3")
    E("v_bfe_u32 v7, v1, 4, 1")
    E("v_lshlrev_b32 v7, 4, v7")
    E("v_sub_u32 v3, v3, v7")
    E("v_add_u32 v3, 16, v3")
    E("s_lshl_b32 s34, s43, 4")
    E("s_add_u32 s34, s34, s33")
    E("s_sub_u32 s34, 2032, s34")
    E("s_lshl_b32 s34, s34, 1")
    E("s_lshl_b32 s35, s30, 17")
    E("s_add_u32 s34, s34, s35")
    E(f"s_add_u32 s55, s34, {XNT}")
    E("v_and_b32 v6, 31, v1")
    E("v_mul_u32_u24 v6, 72, v6")
    E("v_lshrrev_b32 v7, 5, v1")
    E("v_lshl_add_u32 v6, v7, 3, v6")
    E("s_mul_i32 s34, s28, 2304")
    E("v_add_u32 v6, s34, v6")
    E("v_lshrrev_b32 v7, 4, v1")
    E("v_bfe_u32 v8, v1, 2, 2")
    E("v_lshl_add_u32 v7, v7, 3, v8")
    E("v_mul_u32_u24 v7, 72, v7")
    E("v_and_b32 v8, 3, v1")
    E("v_lshl_add_u32 v7, v8, 3, v7")
    E("v_add_u32 v7, s34, v7")
    for a in range(2):
        E("s_lshl_b32 s34, s48, 1")
        E(f"s_add_u32 s34, s34, {a}")
        E("s_mul_i32 s35, s34, 37")
        E("s_lshr_b32 s35, s35, 8")
        E("s_mul_i32 s40, s35, 7")
        E("s_sub_u32 s34, s34, s40")
        E("s_lshl_b32 s35, s35, 6")
        E("s_add_u32 s35, s35, s39")
        E("s_mul_i32 s35, s35, 7")
        E("s_add_u32 s34, s34, s35")
        E(f"s_lshl_b32 s{50+a}, s34, 10")
    stamp(E, 8)
    E.label("K1_POLL2")
    E("s_waitcnt vmcnt(0)")
    E("v_mov_b32 v8, 0")
    for i in range(7):
        E(f"v_xor_b32 v{GR+4*i+1}, v31, v{GR+4*i+1}")
        E(f"v_xor_b32 v{GR+4*i+3}, v31, v{GR+4*i+3}")
        E(f"v_or3_b32 v8, v8, v{GR+4*i+1}, v{GR+4*i+3}")
    E("v_cmp_ne_u32 vcc, 0, v8")
    E("s_nop 4")
    E("s_cbranch_vccz K1_POLL2_OK")
    E("s_sleep 1")
    ld_gran()
    E("s_add_u32 s46, s46, 1")
    E("s_cmp_lt_u32 s46, 0x40000")
    E("s_cbranch_scc1 K1_POLL2")
    E("s_waitcnt vmcnt(0)")
    E.label("K1_POLL2_OK")
    stamp(E, 9)
    E("s_or_b32 s34, s30, s28")
    E("s_cmp_lg_u32 s34, 0")
    E("s_cbranch_scc1 K1_NOTAGW")
    E("s_mov_b64 exec, 1")
    E(f"buffer_store_dword v31, v30, s[{SWS}:{SWS+3}], s49 offen sc1")
    E("s_mov_b64 exec, -1")
    E.label("K1_NOTAGW")
    E(f"buffer_store_dwordx4 v[64:67], v2, s[{SWS}:{SWS+3}], s54 offen")
    E(f"buffer_store_dwordx4 v[68:71], v2, s[{SWS}:{SWS+3}], s54 offen offset:512")
    E(f"buffer_store_dwordx4 v[84:87], v3, s[{SWS}:{SWS+3}], s55 offen")
    regs = [GR + 4 * i for i in range(7)]
    while len(regs) > 1:
        nxt = []
        for i in range(0, len(regs) - 1, 2):
            E(f"v_add_f32 v{regs[i]}, v{regs[i]}, v{regs[i+1]}")
            E(f"v_add_f32 v{regs[i]+2}, v{regs[i]+2}, v{regs[i+1]+2}")
            nxt.append(regs[i])
        if len(regs) & 1: nxt.append(regs[-1])
        regs = nxt
    E("v_mov_b32 v116, v112")
    E("v_mov_b32 v117, v114")
    E("v_mov_b32 v118, v116")
    E("v_mov_b32 v119, v117")
    E("v_permlane32_swap_b32 v116, v118")
    E("v_permlane32_swap_b32 v117, v119")
    E("v_add_f32 v116, v116, v118")
    E("v_add_f32 v117, v117, v119")
    ln_stats(116, 117, 896)
    E("v_mul_f32 v116, v116, v117")
    for i in range(0, 16, 2):
        E(f"v_pk_fma_f32 v[{ACC2+i}:{ACC2+i+1}], v[{ACC2+i}:{ACC2+i+1}], v[116:117], v[116:117] op_sel:[0,1,0] op_sel_hi:[1,1,0] neg_lo:[0,0,1] neg_hi:[0,0,1]")
    for i in range(8): E(f"v_cvt_pk_bf16_f32 v{96+i}, v{ACC2+2*i}, v{ACC2+2*i+1}")
    for o in range(4): E(f"ds_write_b64 v6, v[{96+2*o}:{97+2*o}] offset:{16*o}")
    E("s_waitcnt lgkmcnt(0)")
    for a in range(2):
        for h in range(2):
            E(f"ds_read_b64_tr_b16 v[{104+4*a+2*h}:{105+4*a+2*h}], v7 offset:{288*h+32*a}")
    E("s_waitcnt lgkmcnt(2)")
    E(f"buffer_store_dwordx4 v[104:107], v24, s[{SWS}:{SWS+3}], s50 offen")
    E("s_waitcnt lgkmcnt(0)")
    E(f"buffer_store_dwordx4 v[108:111], v24, s[{SWS}:{SWS+3}], s51 offen")
    stamp(E, 10)
    stamp_flush(E, 11, SWS, 0)
    E("s_endpgm")

    E.label("K1_AUX")
    WOFB, GS = 132352, 66176
    E("s_sub_u32 s29, s2, 224")
    E("s_waitcnt lgkmcnt(0)")
    load_srds(E, [("lar", 32), ("aim", 36), ("cre", 40), ("cim", 44), ("ldt", 8)])
    E("v_mov_b32 v30, 0")
    E("v_lshlrev_b32 v3, 4, v1")
    E("s_mul_i32 s56, s29, 28672")
    E("s_lshl_b32 s57, s28, 10")
    E("s_add_u32 s56, s56, s57")
    E("s_and_b32 s30, s28, 3")
    E("s_lshr_b32 s31, s28, 2")
    E(f"s_mul_i32 s12, s31, {GS}")
    E("v_and_b32 v2, 255, v0")
    E("v_lshlrev_b32 v4, 4, v2")
    E("v_lshlrev_b32 v2, 1, v2")
    E("s_mul_i32 s13, s29, 6")
    E("s_add_u32 s13, s13, s31")
    E("v_and_b32 v25, 15, v1")
    E("v_lshrrev_b32 v26, 4, v1")
    E("s_waitcnt lgkmcnt(0)")
    for r in range(3):
        E(f"s_add_u32 s48, s13, {2*r}")
        E("s_lshl_b32 s49, s48, 2")
        E("s_add_u32 s49, s49, 2")
        E("s_lshl_b32 s48, s49, 8")
        E(f"buffer_load_ushort v{216+r}, v30, s[8:11], s49 offen")
        for k, sr in enumerate((32, 36, 40, 44)):
            E(f"buffer_load_ushort v{200+4*r+k}, v2, s[{sr}:{sr+3}], s48 offen")
    E("s_lshl_b32 s50, s29, 3")
    E("s_add_u32 s50, s50, s28")
    E("s_mul_i32 s51, s50, 896")
    E("s_lshl_b32 s50, s50, 15")
    E("v_lshlrev_b32 v22, 7, v1")
    E("v_min_u32 v23, 6, v1")
    E("v_lshlrev_b32 v23, 7, v23")
    E(f"v_add_u32 v24, {4*TABW}, v4")
    E("v_add_u32 v24, s12, v24")
    E("s_mov_b32 s15, 0")
    E("s_waitcnt vmcnt(10)")
    stamp(E, 1)
    for k, sr in enumerate((32, 36, 40, 44)):
        E(f"buffer_load_dword v{16+k}, v23, s[{sr}:{sr+3}], s51 offen")
    for i in range(3):
        E(f"s_add_u32 m0, s57, {WOFB + 8192*i}")
        E(f"s_add_u32 s48, s56, {8192*i}")
        E(f"buffer_load_dwordx4 v3, s[{SWO}:{SWO+3}], s48 offen lds")
    for k in range(4): E(f"v_mov_b32 v{220+k}, 0")
    E("v_lshlrev_b32 v224, 4, v1")
    E("s_lshr_b32 s48, s50, 5")
    E(f"s_add_u32 s48, s48, {FLG}")
    E(f"buffer_store_dwordx4 v[220:223], v224, s[{SWS}:{SWS+3}], s48 offen sc1")
    E("s_waitcnt vmcnt(8)")
    E("s_cmp_lg_u32 s31, 0")
    E("s_cbranch_scc1 K1A_LOOP")
    E(f"s_add_u32 m0, s57, {WOFB + 8192*3}")
    E(f"s_add_u32 s48, s56, {8192*3}")
    E(f"buffer_load_dwordx4 v3, s[{SWO}:{SWO+3}], s48 offen lds")
    E.label("K1A_LOOP")
    for k in range(4): E(f"v_mov_b32 v{5+k}, v{200+k}")
    E("v_lshlrev_b32 v9, 16, v216")
    for k in range(8): E(f"v_mov_b32 v{200+k}, v{204+k}")
    for k in range(2): E(f"v_mov_b32 v{216+k}, v{217+k}")
    stamp(E, 3)
    kgen(E, "K1A", "s30", "s12", 4 * TABW, stamps=4)
    E("s_cmp_lg_u32 s15, 1")
    E("s_cbranch_scc1 K1A_NOWOF")
    E("s_cmp_ge_u32 s29, 28")
    E("s_cbranch_scc1 K1A_NOWOF")
    E("v_lshrrev_b32 v225, 2, v1")
    E("v_mul_u32_u24 v225, 896, v225")
    E("v_and_b32 v226, 3, v1")
    E("v_lshl_add_u32 v225, v226, 4, v225")
    E("s_lshr_b32 s48, s30, 1")
    E("s_lshl_b32 s48, s48, 6")
    E("s_and_b32 s49, s30, 1")
    E("s_lshl_b32 s49, s49, 3")
    E("s_add_u32 s48, s48, s49")
    E("s_mul_i32 s49, s31, 384")
    E("s_add_u32 s48, s48, s49")
    E(f"s_add_u32 s48, s48, {WOFB}")
    E("v_add_u32 v225, s48, v225")
    for i in range(4):
        E(f"ds_read_b64_tr_b16 v[{228+4*i}:{229+4*i}], v225 offset:{128*i}")
        E(f"ds_read_b64_tr_b16 v[{230+4*i}:{231+4*i}], v225 offset:{128*i + 16*896}")
    E("s_mul_i32 s48, s30, 28672")
    E("s_lshl_b32 s49, s29, 10")
    E("s_add_u32 s48, s48, s49")
    E(f"s_mul_i32 s49, s31, {3*114688}")
    E("s_add_u32 s48, s48, s49")
    for i in range(4):
        E(f"s_add_u32 s49, s48, {WOF + i*114688}")
        E(f"s_waitcnt lgkmcnt({6 - 2*i})")
        E(f"buffer_store_dwordx4 v[{228+4*i}:{231+4*i}], v3, s[{SWS}:{SWS+3}], s49 offen")
    E("s_branch K1A_W2")
    E.label("K1A_NOWOF")
    E("s_waitcnt vmcnt(0)")
    E.label("K1A_W2")
    E("ds_read_b128 v[32:35], v24")
    E("s_lshl_b32 s48, s13, 12")
    E(f"s_add_u32 s48, s48, {KPG}")
    E("s_add_u32 s13, s13, 2")
    E("s_add_u32 s15, s15, 1")
    E("s_cmp_lt_u32 s15, 3")
    E("s_waitcnt lgkmcnt(0)")
    E(f"buffer_store_dwordx4 v[32:35], v4, s[{SWS}:{SWS+3}], s48 offen")
    E("s_cbranch_scc1 K1A_LOOP")
    stamp(E, 2)
    if STAMPS:
        for i in range(9, 11): stamp(E, i)
        stamp_flush(E, 11, SWS, 0)
    E.label("K1_END")
    E("s_endpgm")
```

```python
from gen_common import *
import math
VGPR = 256
GRID = 512
LDS = 81920
DBG3 = os.environ.get("DBG3", "0") == "1"
HSC = os.environ.get("HSC", " sc1")
XMAP = os.environ.get("XMAP", "1") == "1"
RERD = os.environ.get("RERD", "1") == "1"
PACE = int(os.environ.get("PACE", "12"))

class VM:
    def __init__(s, E): s.E = E; s.q = []; s.done = 0
    def issue(s, tag): s.q.append(tag)
    def wait(s, tag):
        idx = max(i for i, t in enumerate(s.q) if t == tag)
        if idx < s.done: return
        n = len(s.q) - 1 - idx
        assert n < 64
        s.E(f"s_waitcnt vmcnt({n})"); s.done = idx + 1

def gemm(E):
    SWSP, SWS, SB = 8, 12, 16
    SX, SO = 20, 24
    load_srds(E, [("wsp", SWSP), ("ws", SWS), ("bsp", SB), ("u", SX), ("out", SO)])
    stamp(E, 0)
    E("s_and_b32 s48, s2, 7")
    E("s_lshr_b32 s49, s2, 3")
    E("s_lshr_b32 s29, s48, 1")
    E("s_lshl_b32 s29, s29, 3")
    E("s_and_b32 s50, s49, 7")
    E("s_add_u32 s29, s29, s50")
    E("s_and_b32 s30, s48, 1")
    E("s_lshl_b32 s30, s30, 2")
    E("s_lshr_b32 s50, s49, 3")
    E("s_add_u32 s30, s30, s50")
    if XMAP:
        E("s_lshl_b32 s29, s48, 2")
        E("s_and_b32 s50, s49, 3")
        E("s_add_u32 s29, s29, s50")
        E("s_lshr_b32 s30, s49, 2")
    E("v_lshrrev_b32 v8, 3, v1")
    E("v_and_b32 v9, 7, v1")
    E("v_lshrrev_b32 v10, 4, v1")
    E("v_xor_b32 v9, v9, v10")
    E("v_lshlrev_b32 v8, 12, v8")
    E("v_lshl_add_u32 v2, v9, 4, v8")
    E("v_xor_b32 v3, 64, v2")
    E("s_lshl_b32 s48, s29, 18")
    E("s_lshl_b32 s49, s28, 10")
    E("s_add_u32 s48, s48, s49")
    E("s_lshl_b32 s49, s28, 1")
    for q in range(8):
        E(f"s_xor_b32 s50, s49, {q}")
        E("s_lshl_b32 s50, s50, 15")
        E(f"s_add_u32 s{32+q}, s48, s50")
    E("s_lshl_b32 s31, s28, 14")
    E("v_lshlrev_b32 v6, 4, v1")
    E("v_add_u32 v7, 4096, v6")
    E("s_lshl_b32 s40, s30, 6")
    E("s_lshl_b32 s49, s28, 4")
    E("s_add_u32 s40, s40, s49")
    E("s_mul_i32 s40, s40, 7168")
    E("s_and_b32 s44, s30, 1")
    E("s_lshl_b32 s45, s44, 10")
    E("v_add_u32 v14, s45, v6")
    E("v_add_u32 v15, 4096, v14")
    E("s_cmp_eq_u32 s44, 0")
    E("s_cselect_b32 s45, 6144, 0")
    E("v_add_u32 v244, s45, v6")
    V = VM(E)
    ACC, ZB, WF = 16, 128, 212
    E("s_waitcnt lgkmcnt(0)")
    def wdma(kp, q):
        E(f"s_add_u32 m0, s31, {(kp & 1) * 8192 + q * 1024}")
        E(f"buffer_load_dwordx4 v{2 + (q & 1)}, s[{SWSP}:{SWSP+3}], s{32+q} offen lds")
        V.issue(("W", kp))
        if q == 7:
            E("v_add_u32 v2, 128, v2")
            E("v_add_u32 v3, 128, v3")
    def zbase(ks): E(f"s_add_u32 s41, s40, {ks * 7168}")
    def zld(ks, a):
        r = ZB + 28 * (ks % 3) + 4 * a
        if a < 6: E(f"buffer_load_dwordx4 v[{r}:{r+3}], v{14 + (a >> 2)}, s[{SWS}:{SWS+3}], s41 offen offset:{(a & 3) * 1024}")
        else: E(f"buffer_load_dwordx4 v[{r}:{r+3}], v244, s[{SWS}:{SWS+3}], s41 offen")
        V.issue(("Z", ks, a))
    for q in range(8): wdma(0, q)
    zbase(0)
    for a in range(7): zld(0, a)
    zbase(1)
    for a in range(7): zld(1, a)
    for q in range(8): wdma(1, q)
    zbase(2)
    for a in range(7): zld(2, a)
    E("v_and_b32 v8, 15, v1")
    E("v_bfe_u32 v9, v1, 1, 3")
    E("v_xor_b32 v9, v9, v10")
    E("v_lshlrev_b32 v8, 7, v8")
    E("v_lshl_add_u32 v4, v9, 4, v8")
    E("v_add_u32 v4, s31, v4")
    E("v_xor_b32 v5, 64, v4")
    E("s_lshl_b32 s48, s29, 2")
    E("s_add_u32 s48, s48, s28")
    E("s_lshl_b32 s57, s48, 5")
    E("s_mul_i32 s48, s48, 28672")
    E(f"s_add_u32 s48, s48, {Z1F}")
    E("s_mul_i32 s49, s30, 7")
    E("s_add_u32 s42, s49, s44")
    E("s_lshl_b32 s42, s42, 9")
    E("s_add_u32 s50, s42, s48")
    E("s_add_u32 s51, s50, 1024")
    E("s_add_u32 s52, s50, 2048")
    E("s_mul_i32 s42, s44, 4088")
    E("s_add_u32 s53, s50, 3072")
    E("s_sub_u32 s53, s53, s42")
    E("s_mul_i32 s42, s44, 504")
    E("s_add_u32 s56, s53, s42")
    E("s_lshl_b32 s48, s29, 2")
    E("s_add_u32 s48, s48, s28")
    E("s_mul_i32 s48, s48, 14336")
    E("s_lshl_b32 s49, s30, 7")
    E("s_add_u32 s54, s48, s49")
    E("s_mul_i32 s48, s28, 7168")
    E("s_min_u32 s49, s30, 6")
    E("s_mul_i32 s49, s49, 114688")
    E("s_add_u32 s49, s49, s48")
    for aa in range(4): E(f"s_add_u32 s{88+aa}, s49, {WOF + aa*28672}")
    E("s_lshl_b32 s49, s29, 2")
    for b in range(4):
        E(f"s_xor_b32 s42, s28, {b}")
        E("s_add_u32 s42, s42, s49")
        E("s_mul_i32 s42, s42, 28672")
        E("s_add_u32 s42, s42, s48")
        E(f"s_add_u32 s{92+b}, s42, {HF}")
    QL = [172, 176, 180, 244, 248, 252] + list(range(184, 228, 4)) + list(range(128, 156, 4)) + list(range(228, 244, 4))
    NW15 = int(os.environ.get("NW15", "0")); NWR1 = int(os.environ.get("NWR1", "4")); NWR2 = int(os.environ.get("NWR2", "4"))
    W0 = {}; worder = [(k, aa) for k in range(4) for aa in range(4)]
    for k in range(4, 7):
        for aa in range(4): W0[(k, aa)] = QL.pop()
    def wof(r):
        k, aa = worder.pop(0); W0[(k, aa)] = r
        E(f"buffer_load_dwordx4 v[{r}:{r+3}], v{6 + (k >> 2)}, s[{SWS}:{SWS+3}], s{88+aa} offen offset:{(k & 3)*1024}")
        V.issue(("wo", k))
    E("v_add_u32 v11, 0x400000, v6")
    E("v_and_b32 v12, 15, v1")
    E("v_lshlrev_b32 v12, 1, v12")
    def wread(kp, h):
        for b in range(4):
            r = WF + 16 * h + 4 * b
            E(f"ds_read_b128 v[{r}:{r+3}], v{4+h} offset:{(kp & 1) * 8192 + b * 2048}")
    E("s_bfe_u32 s42, s2, 0x50003")
    E("s_lshl_b32 s42, s42, 2")
    E("s_add_u32 s42, s42, s28")
    code_touch(E, "g", "s42", 2, 128)
    V.wait(("W", 0))
    stamp(E, 1)
    wread(0, 0)
    Z1R = ZB + 28 * 1
    for ks in range(16):
        kp, h = ks >> 1, ks & 1
        E("s_waitcnt lgkmcnt(0)")
        if h == 0: wread(kp, 1)
        if ks + 3 < 16: zbase(ks + 3)
        if ks in (4, 8, 12): stamp(E, 1 + ks // 4)
        if ks == int(os.environ.get("PRIOKS", "0")): E("s_setprio 1")
        for a in range(7):
            V.wait(("Z", ks, a))
            z = ZB + 28 * (ks % 3) + 4 * a
            for b in range(4):
                c = ACC + 16 * a + 4 * b; w = WF + 16 * h + 4 * b
                src = "0" if ks == 0 else f"v[{c}:{c+3}]"
                E(f"v_mfma_f32_16x16x32_bf16 v[{c}:{c+3}], v[{z}:{z+3}], v[{w}:{w+3}], {src}")
            if ks + 3 < 16: zld(ks + 3, a)
            if h == 0 and kp + 2 < 8:
                if a == 1: E("s_waitcnt lgkmcnt(0)")
                if 2 <= a <= 5:
                    wdma(kp + 2, 2 * (a - 2)); wdma(kp + 2, 2 * (a - 2) + 1)
            if h == 1 and a == 3 and kp + 1 < 8:
                V.wait(("W", kp + 1))
                wread(kp + 1, 0)
            if ks == 13:
                if a == 0:
                    E("v_lshlrev_b32 v14, 3, v1")
                    E("v_add_u32 v14, 0x400000, v14")
                    E("v_and_b32 v15, 15, v1")
                    E("v_mul_u32_u24 v15, 896, v15")
                    E("v_lshl_add_u32 v15, v10, 4, v15")
                if a in (1, 3):
                    E("s_lshl_b32 s42, s28, 11")
                    E(f"s_add_u32 m0, s42, {73728 + (a >> 1) * 1024}")
                    E(f"s_add_u32 s42, s54, {64 * (a >> 1)}")
                    E(f"buffer_load_dwordx4 v15, s[{SX}:{SX+3}], s42 offen lds")
                    V.issue("x")
            if ks == 15 and a >= 7 - NW15: wof(QL.pop(0))
            if ks == 14:
                if a < 6 and a % 2 == 0:
                    E(f"buffer_load_dwordx4 v[{Z1R+2*a}:{Z1R+2*a+3}], v6, s[{SWS}:{SWS+3}], s{50+a//2} offen")
                    V.issue("z1")
                if a == 6:
                    E(f"buffer_load_dwordx2 v[{Z1R+2*a}:{Z1R+2*a+1}], v6, s[{SWS}:{SWS+3}], s53 offen")
                    V.issue("z1")
                if a == 1:
                    E(f"buffer_load_ushort v13, v12, s[{SB}:{SB+3}], s57 offen")
                    V.issue("z1")
    stamp(E, 5)
    E("v_add_u32 v8, s31, v6")
    E("v_xor_b32 v9, 0x4000, v8")
    E("v_xor_b32 v10, 0xC000, v8")
    for a in range(7):
        for i, b in enumerate((1, 3)):
            c = ACC + 16 * a + 4 * b
            E(f"ds_write_b128 v8, v[{c}:{c+3}] offset:{(2*a+i)*1024}")
    E("s_lshl_b32 s43, s29, 10")
    E("s_lshl_b32 s42, s30, 7")
    E("s_add_u32 s42, s42, s43")
    E("s_lshl_b32 s48, s28, 2")
    E("s_add_u32 s42, s42, s48")
    E(f"s_add_u32 s42, s42, {FLG}")
    for i in range(NWR1): wof(QL.pop(0))
    E("s_waitcnt lgkmcnt(0)")
    E("s_barrier")
    T = ZB + 56
    for a in range(7):
        for i in range(2):
            r = ACC + 16 * a + 4 + 8 * i
            E(f"ds_read_b128 v[{r}:{r+3}], v9 offset:{(2*a+i)*1024}")
    for a in range(7):
        E(f"s_waitcnt lgkmcnt({12 - 2*a})")
        for i, b in enumerate((0, 2)):
            c = ACC + 16 * a + 4 * b; r = c + 4
            E(f"v_pk_add_f32 v[{c}:{c+1}], v[{c}:{c+1}], v[{r}:{r+1}]")
            E(f"v_pk_add_f32 v[{c+2}:{c+3}], v[{c+2}:{c+3}], v[{r+2}:{r+3}]")
    for a in range(7):
        c = ACC + 16 * a + 8
        E(f"ds_write_b128 v9, v[{c}:{c+3}] offset:{a*1024}")
    for i in range(NWR2): wof(QL.pop(0))
    E("s_waitcnt lgkmcnt(0)")
    E("s_barrier")
    for a in range(7):
        r = ACC + 16 * a + 12
        E(f"ds_read_b128 v[{r}:{r+3}], v10 offset:{a*1024}")
    stamp(E, 6)
    V.wait("z1")
    E("v_lshlrev_b32 v13, 16, v13")
    for a in range(7):
        E(f"s_waitcnt lgkmcnt({6 - a})")
        c = ACC + 16 * a; r = c + 12; t = c + 4
        E(f"v_pk_add_f32 v[{c}:{c+1}], v[{c}:{c+1}], v[{r}:{r+1}]")
        E(f"v_pk_add_f32 v[{c+2}:{c+3}], v[{c+2}:{c+3}], v[{r+2}:{r+3}]")
        E(f"v_cvt_pk_bf16_f32 v{t}, v{c}, v{c+1}")
        E(f"v_cvt_pk_bf16_f32 v{t+1}, v{c+2}, v{c+3}")
        E(f"v_lshlrev_b32 v{c}, 16, v{t}")
        E(f"v_and_b32 v{c+1}, 0xffff0000, v{t}")
        E(f"v_lshlrev_b32 v{c+2}, 16, v{t+1}")
        E(f"v_and_b32 v{c+3}, 0xffff0000, v{t+1}")
        for k in range(4): E(f"v_add_f32 v{c+k}, v{c+k}, v13")
        E(f"v_cvt_pk_bf16_f32 v{t}, v{c}, v{c+1}")
        E(f"v_cvt_pk_bf16_f32 v{t+1}, v{c+2}, v{c+3}")
        E(f"v_lshlrev_b32 v{c}, 16, v{t}")
        E(f"v_and_b32 v{c+1}, 0xffff0000, v{t}")
        E(f"v_lshlrev_b32 v{c+2}, 16, v{t+1}")
        E(f"v_and_b32 v{c+3}, 0xffff0000, v{t+1}")
        z = Z1R + 2 * a
        E(f"v_lshlrev_b32 v{t}, 16, v{z}")
        E(f"v_and_b32 v{t+1}, 0xffff0000, v{z}")
        E(f"v_lshlrev_b32 v{t+2}, 16, v{z+1}")
        E(f"v_and_b32 v{t+3}, 0xffff0000, v{z+1}")
        E(f"v_pk_mul_f32 v[{c}:{c+1}], v[{c}:{c+1}], v[{t}:{t+1}]")
        E(f"v_pk_mul_f32 v[{c+2}:{c+3}], v[{c+2}:{c+3}], v[{t+2}:{t+3}]")
        o = c + 8 if a % 2 == 0 else c - 16 + 10
        E(f"v_cvt_pk_bf16_f32 v{o}, v{c}, v{c+1}")
        E(f"v_cvt_pk_bf16_f32 v{o+1}, v{c+2}, v{c+3}")
        if a == 6:
            E(f"buffer_store_dwordx2 v[{o}:{o+1}], v14, s[{SWS}:{SWS+3}], s56 offen sc1"); V.issue("hs")
        elif a % 2:
            E(f"buffer_store_dwordx4 v[{o-2}:{o+1}], v11, s[{SWS}:{SWS+3}], s{50+a//2} offen sc1"); V.issue("hs")
    stamp(E, 7)
    E("s_cmp_lg_u32 s30, 7")
    E("s_cbranch_scc1 K2_P3")
    E("s_waitcnt vmcnt(0)")
    flag_store(E, "s42", SWS)
    reread(E, SWS)
    for i in range(8, 12): stamp(E, i)
    stamp_flush(E, 12, SWS, 1)
    E("s_endpgm")
    E.label("K2_P3")
    phase3(E, V, W0, SWS, SO, lambda: [wof(QL.pop(0)) for i in range(len(QL))])

def poll(E, lab, vd, va, so, SWS, pre=False, slp=2):
    E("s_mov_b32 s46, 20000")
    if pre: E(f"s_branch {lab}_C")
    E.label(lab)
    E(f"buffer_load_dword v{vd}, v{va}, s[{SWS}:{SWS+3}], {so} offen sc1")
    E("s_waitcnt vmcnt(0)")
    E.label(lab + "_C")
    E(f"v_cmp_eq_u32 vcc, 0, v{vd}")
    E(f"s_cbranch_vccz {lab}_D")
    E(f"s_sleep {slp}")
    E("s_sub_u32 s46, s46, 1")
    E(f"s_cbranch_scc0 {lab}")
    E.label(lab + "_D")

def reread(E, SWS):
    if not RERD: return 0
    for p in range(3): E(f"buffer_load_dwordx4 v[{80+4*p}:{83+4*p}], v11, s[{SWS}:{SWS+3}], s{50+p} offen")
    E(f"buffer_load_dwordx2 v[92:93], v14, s[{SWS}:{SWS+3}], s56 offen")
    return 4

def flag_store(E, so, SWS, vt=(3, 4)):
    E(f"v_mov_b32 v{vt[0]}, 0")
    E(f"v_mov_b32 v{vt[1]}, 1")
    E("s_mov_b64 exec, 1")
    E(f"buffer_store_dword v{vt[1]}, v{vt[0]}, s[{SWS}:{SWS+3}], {so} offen sc1")
    E("s_mov_b64 exec, -1")

def phase3(E, V, W0, SWS, SO, rest):
    HQ = {(k, b): 80 + 16 * k + 4 * b for k in range(3) for b in range(4)}
    for b in range(4):
        HQ[(3, b)] = 156 + 4 * b
        for k in range(4, 7): HQ[(k, b)] = W0[(k, b)]
    E("s_lshl_b32 s44, s28, 11")
    E("v_mov_b32 v2, v15")
    E("s_lshl_b32 s43, s29, 10")
    E(f"s_add_u32 s43, s43, {FLG}")
    E("v_and_b32 v5, 3, v1")
    E("v_lshlrev_b32 v5, 2, v5")
    E("v_bfe_u32 v9, v1, 2, 3")
    E("v_lshl_add_u32 v5, v9, 7, v5")
    E("s_cmp_lt_u32 s30, 6")
    E("s_cselect_b32 s48, 1, 0")
    E("v_and_b32 v9, 15, v1")
    E("v_lshrrev_b32 v9, s48, v9")
    E("v_lshlrev_b32 v9, 7, v9")
    E("s_lshr_b32 s49, s44, s48")
    E("s_lshl_b32 s45, s30, 12")
    E("s_add_u32 s45, s45, s49")
    E("s_lshr_b32 s49, s29, 3")
    E("s_lshl_b32 s49, s49, 2")
    E("s_add_u32 s45, s45, s49")
    E(f"s_add_u32 s45, s45, {FLG + 256*128}")
    E(f"buffer_load_dword v10, v9, s[{SWS}:{SWS+3}], s45 offen sc1")
    V.issue("py")
    E("s_barrier")
    E("v_lshrrev_b32 v12, 3, v1")
    E("v_lshlrev_b32 v12, 12, v12")
    E("v_and_b32 v13, 7, v1")
    E("v_lshl_add_u32 v12, v13, 4, v12")
    E("s_lshl_b32 s47, s30, 2")
    E("s_add_u32 s47, s47, s28")
    E("s_lshl_b32 s47, s47, 16")
    E("s_lshl_b32 s49, s29, 7")
    E("s_add_u32 s47, s47, s49")
    E(f"s_add_u32 s47, s47, {YT}")
    E("s_add_u32 s49, s47, 32768")
    V.wait("hs")
    flag_store(E, "s42", SWS)
    V.issue("fl")
    for i in range(reread(E, SWS)): V.issue("rr")
    stamp(E, 8)
    V.wait("py")
    E("v_cmp_eq_u32 vcc, 0, v10")
    E("s_mov_b64 s[40:41], vcc")
    E("s_cbranch_vccnz K2G_NOY")
    E(f"s_add_u32 m0, s44, 65536")
    E(f"buffer_load_dwordx4 v12, s[{SWS}:{SWS+3}], s47 offen sc1 lds")
    E(f"s_add_u32 m0, s44, {65536 + 1024}")
    E(f"buffer_load_dwordx4 v12, s[{SWS}:{SWS+3}], s49 offen sc1 lds")
    E.label("K2G_NOY")
    rest()
    WR = {k: [W0[(k % 4 if k > 3 else k, aa)] for aa in range(4)] for k in range(7)}
    for k in range(4, 7):
        for aa in range(4):
            E(f"s_add_u32 m0, s31, {((k-4)*4+aa)*1024}")
            E(f"s_add_u32 s48, s{88+aa}, {k*1024}")
            E(f"buffer_load_dwordx4 v6, s[{SWS}:{SWS+3}], s48 offen lds")
    E("v_lshlrev_b32 v4, 3, v1")
    E("s_waitcnt lgkmcnt(0)")
    E("s_cmp_lg_u32 s28, 0")
    E("s_cbranch_scc1 K2G_PH_D")
    poll(E, "K2G_PH", 10, 5, "s43", SWS, slp=1)
    E("s_waitcnt vmcnt(0)")
    E("s_barrier")
    stamp(E, 9)
    V.q = []; V.done = 0
    def hld(k, b):
        if k == 6 and b == 0:
            E(f"buffer_load_dword v10, v9, s[{SWS}:{SWS+3}], s45 offen sc1")
            V.issue("py2")
        r = HQ[(k, b)]
        if k == 3:
            for e in range(2):
                E(f"buffer_load_dwordx2 v[{r+2*e}:{r+2*e+1}], v4, s[{SWS}:{SWS+3}], s{92+b} offen offset:{3072 + 512*e}{HSC}")
                V.issue((k, b))
            return
        E(f"buffer_load_dwordx4 v[{r}:{r+3}], v{6 + (k >> 2)}, s[{SWS}:{SWS+3}], s{92+b} offen offset:{(k & 3)*1024}{HSC}")
        V.issue((k, b))
    HPRE = int(os.environ.get("HPRE", "2"))
    for k in range(HPRE):
        for b in range(4): hld(k, b)
    if DBG3: stamp(E, 2)
    def wrd(k):
        for aa in range(4):
            r = WR[k][aa]
            E(f"ds_read_b128 v[{r}:{r+3}], v8 offset:{((k-4)*4+aa)*1024}")
    for k in range(1, 4): E(f"v_xor_b32 v{12+k}, {k << 14}, v8")
    E("v_lshrrev_b32 v3, 4, v1")
    E("v_bfe_u32 v11, v1, 2, 2")
    E("v_lshl_add_u32 v11, v3, 3, v11")
    E("v_lshlrev_b32 v11, 7, v11")
    E("v_and_b32 v3, 3, v1")
    E("v_lshl_add_u32 v11, v3, 3, v11")
    E("s_lshl_b32 s48, s28, 5")
    E("s_add_u32 s48, s48, 65536")
    E("v_add_u32 v11, s48, v11")
    E("s_lshl_b32 s48, s28, 11")
    E("v_add_u32 v3, s48, v6")
    E("v_add_u32 v3, 73728, v3")
    for k in range(7):
        if k >= 4: E(f"s_waitcnt lgkmcnt({(6 - k) * 4})")
        if k == 6:
            V.wait("py2")
            E("s_cmp_eq_u64 s[40:41], 0")
            E("s_cbranch_scc1 K2G_NOY2")
            E("v_cmp_eq_u32 vcc, 0, v10")
            E("s_mov_b64 s[40:41], vcc")
            E("s_cbranch_vccnz K2G_NOY2")
            E(f"s_add_u32 m0, s44, 65536")
            E(f"buffer_load_dwordx4 v12, s[{SWS}:{SWS+3}], s47 offen sc1 lds")
            E(f"s_add_u32 m0, s44, {65536 + 1024}")
            E(f"buffer_load_dwordx4 v12, s[{SWS}:{SWS+3}], s49 offen sc1 lds")
            E("s_waitcnt vmcnt(2)")
            E.label("K2G_NOY2")
        for b in range(4):
            V.wait((k, b))
            if DBG3 and b == 0 and k in (0, 4): stamp(E, 3 + k // 4)
            for aa in range(4):
                c = 16 + 16 * b + 4 * aa; a = WR[k][aa]; bb = HQ[(k, b)]
                E(f"v_mfma_f32_16x16x32_bf16 v[{c}:{c+3}], v[{a}:{a+3}], v[{bb}:{bb+3}], {'0' if k == 0 else f'v[{c}:{c+3}]'}")
            if k + HPRE < 7: hld(k + HPRE, b)
        if k < 3: wrd(k + 4)
    stamp(E, 10)
    E("s_cmp_eq_u64 s[40:41], 0")
    E("s_cbranch_scc1 K2G_YOK")
    poll(E, "K2G_PY", 10, 9, "s45", SWS)
    E(f"s_add_u32 m0, s44, 65536")
    E(f"buffer_load_dwordx4 v12, s[{SWS}:{SWS+3}], s47 offen sc1 lds")
    E(f"s_add_u32 m0, s44, {65536 + 1024}")
    E(f"buffer_load_dwordx4 v12, s[{SWS}:{SWS+3}], s49 offen sc1 lds")
    E.label("K2G_YOK")
    for b in range(1, 4):
        for aa in range(4):
            c = 16 + 16 * b + 4 * aa
            E(f"ds_write_b128 v8, v[{c}:{c+3}] offset:{((b-1)*4+aa)*1024}")
    X, Y, T1, T2, OUT, PR = 128, 136, 144, 160, 176, 80
    for hh in range(2): E(f"ds_read_b128 v[{X+4*hh}:{X+4*hh+3}], v3 offset:{1024*hh}")
    E("s_waitcnt vmcnt(0) lgkmcnt(0)")
    if DBG3: stamp(E, 5)
    E("s_barrier")
    if DBG3: stamp(E, 1)
    for hh in range(2):
        for h2 in range(2):
            E(f"ds_read_b64_tr_b16 v[{Y+4*hh+2*h2}:{Y+1+4*hh+2*h2}], v11 offset:{(32*hh+4*h2)*128}")
    for aa in range(4):
        for k in range(1, 4):
            r = PR + 16 * (k - 1) + 4 * aa
            E(f"ds_read_b128 v[{r}:{r+3}], v{12+k} offset:{((k-1)*4+aa)*1024}")
    for i in range(8):
        E(f"v_lshlrev_b32 v{T1+2*i}, 16, v{X+i}")
        E(f"v_and_b32 v{T1+2*i+1}, 0xffff0000, v{X+i}")
    E("s_waitcnt lgkmcnt(12)")
    for i in range(8):
        E(f"v_lshlrev_b32 v{T2+2*i}, 16, v{Y+i}")
        E(f"v_and_b32 v{T2+2*i+1}, 0xffff0000, v{Y+i}")
    for i in range(8): E(f"v_pk_add_f32 v[{T1+2*i}:{T1+2*i+1}], v[{T1+2*i}:{T1+2*i+1}], v[{T2+2*i}:{T2+2*i+1}]")
    for i in range(8): E(f"v_cvt_pk_bf16_f32 v{X+i}, v{T1+2*i}, v{T1+2*i+1}")
    for i in range(8):
        E(f"v_lshlrev_b32 v{T1+2*i}, 16, v{X+i}")
        E(f"v_and_b32 v{T1+2*i+1}, 0xffff0000, v{X+i}")
    for aa in range(4):
        E(f"s_waitcnt lgkmcnt({9 - 3*aa})")
        for p in (0, 2):
            c = 16 + 4 * aa + p; r = PR + 4 * aa + p
            E(f"v_pk_add_f32 v[{c}:{c+1}], v[{c}:{c+1}], v[{r}:{r+1}]")
            E(f"v_pk_add_f32 v[{r+16}:{r+17}], v[{r+16}:{r+17}], v[{r+32}:{r+33}]")
        for p in (0, 2):
            c = 16 + 4 * aa + p; r = PR + 4 * aa + p
            E(f"v_pk_add_f32 v[{c}:{c+1}], v[{c}:{c+1}], v[{r+16}:{r+17}]")
        for p in (0, 2):
            c = 16 + 4 * aa + p; r = PR + 4 * aa + p; t = T1 + 4 * aa + p
            E(f"v_cvt_pk_bf16_f32 v{r}, v{c}, v{c+1}")
            E(f"v_lshlrev_b32 v{c}, 16, v{r}")
            E(f"v_and_b32 v{c+1}, 0xffff0000, v{r}")
            E(f"v_pk_add_f32 v[{c}:{c+1}], v[{c}:{c+1}], v[{t}:{t+1}]")
            E(f"v_cvt_pk_bf16_f32 v{OUT + 2*aa + p//2}, v{c}, v{c+1}")
        if aa & 1:
            hh = aa >> 1
            E(f"buffer_store_dwordx4 v[{OUT+4*hh}:{OUT+4*hh+3}], v2, s[{SO}:{SO+3}], s54 offen offset:{64*hh}")
    stamp(E, 11)
    stamp_flush(E, 12, SWS, 1)
    E("s_endpgm")

TABW = 57 * 272
URB = 4 * TABW
KPB = URB + 4608 + 16
KXB = 70752
KX1 = 4160
UR2 = 40960
LOG2E = 1.4426950408889634

def kgen(E, P, swq, sgb, kpoff, stamps=0, pre_write=None):
    import struct
    def exp_acc(dst, src):
        hi32 = struct.unpack("<f", struct.pack("<f", LOG2E))[0]; lo = LOG2E - hi32
        E(f"v_mul_f32 v12, {f32hex(hi32)}, {src}")
        E(f"v_mov_b32 v14, {f32hex(hi32)}")
        E(f"v_fma_f32 v13, {src}, v14, -v12")
        E(f"v_fmac_f32 v13, {f32hex(lo)}, {src}")
        E(f"v_exp_f32 v12, v12")
        E(f"v_mul_f32 v13, {f32hex(math.log(2.0))}, v13")
        E(f"v_fma_f32 {dst}, v12, v13, v12")
    E("v_lshlrev_b32 v5, 16, v5")
    exp_acc("v9", "v9"); bf16r(E, "v9", "v9")
    exp_acc("v5", "v5"); bf16r(E, "v5", "v5")
    if stamps: stamp(E, stamps)
    for r in (6, 7, 8): E(f"v_lshlrev_b32 v{r}, 16, v{r}")
    E("v_mul_f32 v5, -v5, v9")
    E("v_mul_f32 v6, v6, v9")
    T, F, H, W = 32, 48, 66, 84
    TH, FH, HH, WH, GH = 96, 104, 120, 138, 140
    E(f"v_mul_f32 v{H}, v7, v9")
    E(f"v_mul_f32 v{H+1}, v8, v9")
    E(f"v_mul_f32 v{H}, {f32hex(64.0)}, v{H}")
    E(f"v_mul_f32 v{H+1}, {f32hex(64.0)}, v{H+1}")
    for m, dst, t in ((1, T + 2, 27), (8, F + 2, 28), (128, W, 29)):
        E(f"v_mul_f32 v{t}, {f32hex(m * LOG2E)}, v5")
        E(f"v_mul_f32 v{dst+1}, {f32hex(m / (2 * math.pi))}, v6")
        E(f"v_exp_f32 v{t}, v{t}")
        E(f"v_cos_f32 v{dst}, v{dst+1}")
        E(f"v_sin_f32 v{dst+1}, v{dst+1}")
    for m, dst, t in ((1, T + 2, 27), (8, F + 2, 28), (128, W, 29)):
        E(f"v_mul_f32 v{dst}, v{dst}, v{t}")
        E(f"v_mul_f32 v{dst+1}, v{dst+1}, v{t}")
    def cmul_batch(lst):
        for z, x, y in lst:
            E(f"v_mul_f32 v{z}, v{x}, v{y}")
            E(f"v_mul_f32 v{z+1}, v{x+1}, v{y}")
        for z, x, y in lst:
            E(f"v_fma_f32 v{z}, -v{x+1}, v{y+1}, v{z}")
            E(f"v_fmac_f32 v{z+1}, v{x}, v{y+1}")
    def hmul_batch(lst, rows):
        for z, x, y in lst: E(f"v_pk_mul_f16 v{z}, v{x}, v{y} op_sel:[0,0] op_sel_hi:[1,0]")
        for (z, x, y), r in zip(lst, rows):
            E(f"v_pk_fma_f16 v{z}, v{x}, v{y}, v{z} op_sel:[1,1,0] op_sel_hi:[0,1,1] neg_lo:[1,0,0]")
        for (z, x, y), r in zip(lst, rows): E(f"ds_write_b32 v11, v{z} offset:{r * 272}")
    t = lambda k: T + 2 * k
    f = lambda k: F + 2 * k
    h = lambda k: H + 2 * k
    w = lambda i: W + 2 * i
    E(f"s_mul_i32 s48, {swq}, {TABW}")
    if sgb: E(f"s_add_u32 s48, s48, {sgb}")
    E("v_lshlrev_b32 v11, 2, v1")
    E("v_add_u32 v11, s48, v11")
    def put(row, dst, src, neg):
        E(f"v_cvt_pk_f16_f32 v{dst}, v{src}, {'-' if neg else ''}v{src+1}")
        if row is not None: E(f"ds_write_b32 v11, v{dst} offset:{row * 272}")
    hrow = [0, 8, 16, 20, 24, 26, 28, 30] + [32 + k for k in range(8)]
    def sq_batch(lst):
        for z, x in lst:
            E(f"v_mul_f32 v{z}, v{x}, v{x}")
            E(f"v_add_f32 v{z+1}, v{x}, v{x}")
        for z, x in lst:
            E(f"v_fma_f32 v{z}, -v{x+1}, v{x+1}, v{z}")
            E(f"v_mul_f32 v{z+1}, v{z+1}, v{x+1}")
    def hm(lst):
        for z, x, y, r in lst: E(f"v_pk_mul_f16 v{z}, v{x}, v{y} op_sel:[0,0] op_sel_hi:[1,0]")
        for z, x, y, r in lst: E(f"v_pk_fma_f16 v{z}, v{x}, v{y}, v{z} op_sel:[1,1,0] op_sel_hi:[0,1,1] neg_lo:[1,0,0]")
        for z, x, y, r in lst:
            if r is not None: E(f"ds_write_b32 v11, v{z} offset:{r * 272}")
    WQ = 180
    sq_batch([(t(2), t(1)), (f(2), f(1)), (w(1), w(0))])
    if pre_write: pre_write()
    E("v_mov_b32 v30, 0x3c00")
    E(f"ds_write_b32 v11, v30 offset:{41 * 272}")
    put(0, HH, h(0), True); put(42, FH + 1, f(1), False); put(None, TH + 1, t(1), True); put(None, WQ, w(0), True)
    sq_batch([(t(4), t(2)), (f(4), f(2)), (w(2), w(1))])
    put(43, FH + 2, f(2), False); put(None, TH + 2, t(2), True); put(None, WQ + 1, w(1), True)
    sq_batch([(f(8), f(4)), (w(3), w(2))])
    put(45, FH + 4, f(4), False); put(None, TH + 4, t(4), True); put(None, WQ + 2, w(2), True)
    hm([(HH + 1, HH, WQ, hrow[1]), (HH + 2, HH, WQ + 1, hrow[2]), (TH + 3, TH + 2, TH + 1, None), (FH + 3, FH + 2, FH + 1, 44),
        (HH + 4, HH, WQ + 2, hrow[4]), (TH + 5, TH + 4, TH + 1, None), (TH + 6, TH + 4, TH + 2, None),
        (FH + 5, FH + 4, FH + 1, 46), (FH + 6, FH + 4, FH + 2, 47)])
    put(49, FH + 8, f(8), False); put(None, WH, w(3), True)
    hm([(HH + 3, HH + 1, WQ + 1, hrow[3]), (HH + 5, HH + 1, WQ + 2, hrow[5]), (HH + 6, HH + 2, WQ + 2, hrow[6]),
        (TH + 7, TH + 4, TH + 3, None), (FH + 7, FH + 4, FH + 3, 48)] +
       [(HH + 8 + k, HH + k, WH, hrow[8 + k]) for k in (0, 1, 2, 4)] + [(FH + 8 + k, FH + 8, FH + k, 49 + k) for k in range(1, 7)])
    if stamps > 2: stamp(E, stamps + 2)
    hm([(HH + 7, HH + 3, WQ + 2, hrow[7]), (FH + 15, FH + 8, FH + 7, 56)] + [(HH + 8 + k, HH + k, WH, hrow[8 + k]) for k in (3, 5, 6)])
    rows = [(8 * hh + e, HH + hh, TH + e) for hh in range(2) for e in range(1, 8)]
    rows += [(16 + 4 * hh + e, HH + 2 + hh, TH + 2 * e) for hh in range(2) for e in range(1, 4)]
    rows += [(24 + 2 * hh + 1, HH + 4 + hh, TH + 4) for hh in range(4)]
    rows += [(40, HH + 8, WH), (39, HH + 7, WH)]
    for lo_, hi_ in ((0, 13), (13, 26)):
        hmul_batch([(GH + i, x, y) for i, (r, x, y) in list(enumerate(rows))[lo_:hi_]], [r for r, x, y in rows[lo_:hi_]])
    if stamps: stamp(E, stamps + 1)
    E("v_mul_u32_u24 v12, 272, v25")
    E("v_lshl_add_u32 v12, v26, 4, v12")
    E("v_add_u32 v12, s48, v12")
    FRG = 32
    for q in range(4):
        E(f"ds_read_b128 v[{FRG+16*q}:{FRG+16*q+3}], v12 offset:{41*272 + 64*q}")
        for m in range(3):
            if q == 3 and m == 2: E("s_waitcnt lgkmcnt(14)")
            E(f"ds_read_b128 v[{FRG+16*q+4+4*m}:{FRG+16*q+7+4*m}], v12 offset:{16*m*272 + 64*q}")
    E("v_lshlrev_b32 v13, 4, v1")
    E("v_add_u32 v15, s48, v13")
    E(f"s_lshl_b32 s48, {swq}, 10")
    if sgb: E(f"s_add_u32 s48, s48, {sgb}")
    E("v_add_u32 v13, s48, v13")
    E(f"v_mov_b32 v14, {kpoff}")
    E("v_lshl_add_u32 v14, v25, 4, v14")
    if sgb: E(f"v_add_u32 v14, {sgb}, v14")
    for q in range(4):
        for m in range(3):
            E(f"s_waitcnt lgkmcnt({14 - 4*q - m})")
            c = 160 + 4 * m
            E(f"v_mfma_f32_16x16x32_f16 v[{c}:{c+3}], v[{FRG+16*q+4+4*m}:{FRG+16*q+7+4*m}], v[{FRG+16*q}:{FRG+16*q+3}], {'0' if q == 0 else f'v[{c}:{c+3}]'}")
    for m in range(3): E(f"ds_write_b128 v15, v[{160+4*m}:{163+4*m}] offset:{1024*m}")
    E("s_waitcnt lgkmcnt(0)")
    E("s_barrier")
    if stamps > 2: stamp(E, stamps + 3)
    E(f"s_cmp_eq_u32 {swq}, 3")
    E(f"s_cbranch_scc1 {P}_SKIPM")
    for ww in range(4): E(f"ds_read_b128 v[{160+4*ww}:{163+4*ww}], v13 offset:{ww*TABW}")
    E("s_waitcnt lgkmcnt(0)")
    for k in range(4): E(f"v_add_f32 v{160+k}, v{160+k}, v{164+k}")
    for k in range(4): E(f"v_add_f32 v{168+k}, v{168+k}, v{172+k}")
    for k in range(4): E(f"v_add_f32 v{160+k}, v{160+k}, v{168+k}")
    for k in range(4): E(f"v_mul_f32 v{160+k}, {f32hex(2.0 / 64)}, v{160+k}")
    E("v_cvt_pk_bf16_f32 v164, v160, v161")
    E("v_cvt_pk_bf16_f32 v165, v162, v163")
    E(f"s_cmp_eq_u32 {swq}, 1")
    E(f"s_cbranch_scc1 {P}_M1")
    E(f"s_cmp_eq_u32 {swq}, 2")
    E(f"s_cbranch_scc1 {P}_M2")
    E("v_lshrrev_b32 v12, 1, v26")
    E("v_lshl_add_u32 v14, v12, 8, v14")
    E("v_and_b32 v12, 1, v26")
    E("v_lshl_add_u32 v14, v12, 3, v14")
    E("ds_write_b64 v14, v[164:165]")
    E(f"s_branch {P}_SKIPM")
    E.label(f"{P}_M1")
    E("v_lshl_add_u32 v12, v26, 8, v14")
    E("v_lshl_add_u32 v13, v26, 9, v14")
    E("s_mov_b32 exec_hi, 0")
    E("ds_write_b16 v12, v164 offset:512")
    E("ds_write_b16_d16_hi v12, v164 offset:516")
    E("ds_write_b16 v12, v165 offset:520")
    E("ds_write_b16_d16_hi v12, v165 offset:524")
    E("s_mov_b32 exec_hi, -1")
    E("s_mov_b32 exec_lo, 0")
    E("ds_write_b16 v13, v164")
    E("ds_write_b16_d16_hi v13, v164 offset:8")
    E("ds_write_b16 v13, v165 offset:256")
    E("ds_write_b16_d16_hi v13, v165 offset:264")
    E("s_mov_b64 exec, -1")
    E(f"s_branch {P}_SKIPM")
    E.label(f"{P}_M2")
    E("v_lshl_add_u32 v12, v26, 10, v14")
    E("s_mov_b32 exec_hi, 0")
    E("ds_write_b16 v12, v164 offset:2048")
    E("ds_write_b16_d16_hi v12, v164 offset:2304")
    E("ds_write_b16 v12, v165 offset:2560")
    E("ds_write_b16_d16_hi v12, v165 offset:2816")
    E("s_mov_b32 exec_hi, 1")
    E("s_mov_b32 exec_lo, 0")
    E("ds_write_b16 v12, v164 offset:2046")
    E("s_mov_b64 exec, -1")
    E.label(f"{P}_SKIPM")
    if stamps > 2: stamp(E, stamps + 4)
    E("s_waitcnt lgkmcnt(0)")
    E("s_barrier")

def conv(E):
    SWS, SLA, SAI, SCR, SCI, SDT, SDS = 12, 20, 24, 32, 36, 40, 44
    load_srds(E, [("ws", SWS), ("lar", SLA), ("aim", SAI), ("cre", SCR), ("cim", SCI), ("ldt", SDT), ("dsk", SDS)])
    stamp(E, 0)
    E("s_sub_u32 s29, s2, 256")
    E("s_mov_b32 s52, 0")
    E("s_add_u32 s48, s29, 192")
    E("s_lshl_b32 s29, s29, 1")
    E("s_cmp_ge_u32 s29, 384")
    E("s_cselect_b32 s29, s48, s29")
    E("s_cselect_b32 s52, 1, 0")
    E("v_lshlrev_b32 v2, 1, v0")
    E("s_lshl_b32 s30, s29, 9")
    E("s_lshl_b32 s31, s29, 1")
    E("v_mov_b32 v3, 0")
    E("v_lshlrev_b32 v4, 4, v1")
    E("s_lshl_b32 s48, s29, 12")
    E("s_lshl_b32 s51, s28, 10")
    E("s_add_u32 s50, s48, s51")
    E(f"s_add_u32 s50, s50, {XNT}")
    E(f"s_add_u32 s51, s51, {URB}")
    E("s_mov_b32 m0, s51")
    E(f"s_mov_b32 s53, {URB}")
    E("s_waitcnt lgkmcnt(0)")
    E(f"buffer_load_ushort v9, v3, s[{SDT}:{SDT+3}], s31 offen")
    E(f"buffer_load_ushort v5, v2, s[{SLA}:{SLA+3}], s30 offen")
    E(f"buffer_load_ushort v6, v2, s[{SAI}:{SAI+3}], s30 offen")
    E(f"buffer_load_ushort v7, v2, s[{SCR}:{SCR+3}], s30 offen")
    E(f"buffer_load_ushort v8, v2, s[{SCI}:{SCI+3}], s30 offen")
    E(f"buffer_load_ushort v10, v3, s[{SDS}:{SDS+3}], s31 offen")
    E(f"buffer_load_ushort v205, v3, s[{SDS}:{SDS+3}], s31 offen offset:2")
    E(f"buffer_load_dwordx4 v4, s[{SWS}:{SWS+3}], s50 offen lds")
    E("s_lshl_b32 s48, s29, 11")
    E("s_lshl_b32 s49, s28, 10")
    E("s_add_u32 s48, s48, s49")
    E(f"s_add_u32 s48, s48, {KPG}")
    E("s_add_u32 s50, s50, 4096")
    E("s_mov_b32 s54, s52")
    E(f"buffer_load_dwordx4 v[206:209], v4, s[{SWS}:{SWS+3}], s48 offen")
    E(f"buffer_load_dwordx4 v[210:213], v4, s[{SWS}:{SWS+3}], s50 offen")
    E("v_mov_b32 v12, 0"); E("v_mov_b32 v13, 0")
    E("v_lshlrev_b32 v11, 3, v1")
    E(f"v_add_u32 v14, {URB + 4096}, v11")
    E("ds_write_b64 v14, v[12:13]")
    E("v_and_b32 v11, 24, v11")
    E(f"v_add_u32 v11, {KXB}, v11")
    E("ds_write_b64 v11, v[12:13]")
    E(f"ds_write_b64 v11, v[12:13] offset:{KX1}")
    E(f"v_mov_b32 v11, {KPB - 8}")
    E("ds_write_b64 v11, v[12:13]")
    GA = 16
    E("v_lshlrev_b32 v11, 3, v0")
    for i in range(9):
        E(f"v_add_u32 v{GA+i}, {i-1}, v11")
    for i in range(9): E(f"v_cvt_f32_i32 v{GA+i}, v{GA+i}")
    for i in range(9): bf16r(E, f"v{GA+i}", f"v{GA+i}")
    for i in range(9): E(f"v_cvt_i32_f32 v{GA+i}, v{GA+i}")
    for i in range(9): E(f"v_min_i32 v{GA+i}, 2047, v{GA+i}")
    E(f"v_mov_b32 v11, {KPB}")
    for i in range(9): E(f"v_lshl_add_u32 v{GA+i}, v{GA+i}, 1, v11")
    E("v_and_b32 v25, 15, v1")
    E("v_lshrrev_b32 v26, 4, v1")
    E("s_waitcnt vmcnt(3)")
    E("v_lshlrev_b32 v205, 16, v205")
    E("v_lshlrev_b32 v9, 16, v9")
    E("v_lshlrev_b32 v10, 16, v10")
    kgen(E, "K2C", "s28", None, KPB, stamps=1)
    E.label("K2C_LOOP")
    stamp(E, 3)
    for i in range(9): E(f"ds_read_u16 v{40 + i}, v{GA + i}")
    E("v_lshlrev_b32 v11, 4, v0")
    E(f"v_add_u32 v11, {KXB + 32}, v11")
    E("s_lshl_b32 s48, s28, 7")
    E("v_lshl_add_u32 v12, v26, 3, v25")
    E("v_lshlrev_b32 v12, 1, v12")
    E("v_and_b32 v14, 1, v25")
    E("v_xor_b32 v14, 1, v14")
    E(f"v_mul_u32_u24 v14, {KX1 + 2}, v14")
    E(f"s_add_u32 s49, s48, {KXB + 2}")
    E("v_add3_u32 v12, v12, v14, s49")
    E("v_lshlrev_b32 v13, 4, v26")
    E("v_lshlrev_b32 v14, 5, v25")
    E("v_sub_u32 v13, v13, v14")
    E("s_add_u32 s49, s48, s53")
    E(f"s_add_u32 s49, s49, {4064 - 3584}")
    E("v_add_u32 v13, s49, v13")
    E("s_waitcnt lgkmcnt(0)")
    for i in range(4):
        E(f"v_lshl_or_b32 v{32+i}, v{42+2*i}, 16, v{41+2*i}")
        E(f"v_lshl_or_b32 v{36+i}, v{41+2*i}, 16, v{40+2*i}")
    E("ds_write_b128 v11, v[32:35]")
    E(f"ds_write_b128 v11, v[36:39] offset:{KX1}")
    E("s_waitcnt vmcnt(0) lgkmcnt(0)")
    E("s_barrier")
    stamp(E, 4)
    E("s_cmp_lg_u32 s52, 0")
    E("s_cbranch_scc1 K2C_NOKP")
    E("v_lshlrev_b32 v11, 4, v0")
    E(f"v_add_u32 v14, {KPB}, v11")
    E("ds_write_b128 v14, v[206:209]")
    E(f"ds_write_b128 v11, v[210:213] offset:{UR2}")
    E("v_mov_b32 v14, 0"); E("v_mov_b32 v15, 0")
    E("v_lshlrev_b32 v11, 3, v1")
    E(f"ds_write_b64 v11, v[14:15] offset:{UR2 + 4096}")
    E.label("K2C_NOKP")
    AF, BF, AC = 32, 96, 160
    def rd(rho, k):
        for i in range(4): E(f"ds_read_b32 v{AF+32*rho+4*k+i}, v12 offset:{512*k + 64*rho + 4*i}")
        E(f"ds_read_b128 v[{BF+32*rho+4*k}:{BF+32*rho+4*k+3}], v13 offset:{512*(7-k) + 64*rho}")
    def mm(rho, q, p, first):
        c = AC + 4 * (q + p); a = AF + 32 * rho + 4 * q; b = BF + 32 * rho + 4 * p
        E(f"v_mfma_f32_16x16x32_bf16 v[{c}:{c+3}], v[{a}:{a+3}], v[{b}:{b+3}], {'0' if first else f'v[{c}:{c+3}]'}")
    seen = set()
    def stage(rho, k):
        prs = [(q, p) for q in range(k + 1) for p in range(k + 1) if max(q, p) == k and q + p <= 7]
        prs.sort(key=lambda x: (x[0] + x[1] + (8 if x[0] < x[1] else 0)))
        for q, p in prs:
            mm(rho, q, p, (q + p) not in seen); seen.add(q + p)
    seq = [(rho, k) for rho in range(2) for k in range(8)]
    rd(*seq[0]); rd(*seq[1]); rd(*seq[2])
    for i, (rho, k) in enumerate(seq):
        rem = min(2, len(seq) - 1 - i)
        E(f"s_waitcnt lgkmcnt({5 * rem})")
        if i + 3 < len(seq): rd(*seq[i + 3])
        stage(rho, k)
    stamp(E, 5)
    E("s_lshl_b32 s48, s28, 13")
    E("v_add_u32 v11, s48, v4")
    for o in range(8): E(f"ds_write_b128 v11, v[{AC+4*o}:{AC+4*o+3}] offset:{o*1024}")
    E("s_lshl_b32 s48, s28, 11")
    E("v_add_u32 v11, s48, v4")
    E("v_lshlrev_b32 v12, 3, v26")
    E("v_lshl_add_u32 v12, v25, 5, v12")
    E("s_lshl_b32 s48, s28, 10")
    E("s_sub_u32 s49, s53, s48")
    E(f"s_add_u32 s49, s49, {4088 - 512}")
    E("v_sub_u32 v13, s49, v12")
    E("s_lshl_b32 s49, s29, 12")
    E("s_add_u32 s49, s49, s48")
    E(f"s_add_u32 s49, s49, {YT}")
    E("s_waitcnt lgkmcnt(0)")
    E("s_barrier")
    for e in range(2):
        for ww in range(4):
            r = 32 + 16 * e + 4 * ww
            E(f"ds_read_b128 v[{r}:{r+3}], v11 offset:{ww*8192 + e*1024}")
        E(f"ds_read_b64 v[{64+2*e}:{65+2*e}], v13 offset:{512*(1-e)}")
    for e in range(2):
        E(f"s_waitcnt lgkmcnt({5*(1-e)})")
        r = 32 + 16 * e; u = 64 + 2 * e; s = 72 + 8 * e
        for k in (0, 2):
            E(f"v_pk_add_f32 v[{r+k}:{r+k+1}], v[{r+k}:{r+k+1}], v[{r+4+k}:{r+5+k}]")
            E(f"v_pk_add_f32 v[{r+8+k}:{r+9+k}], v[{r+8+k}:{r+9+k}], v[{r+12+k}:{r+13+k}]")
        for k in (0, 2):
            E(f"v_pk_add_f32 v[{r+k}:{r+k+1}], v[{r+k}:{r+k+1}], v[{r+8+k}:{r+9+k}]")
        E(f"v_and_b32 v{s}, 0xffff0000, v{u+1}")
        E(f"v_lshlrev_b32 v{s+1}, 16, v{u+1}")
        E(f"v_and_b32 v{s+2}, 0xffff0000, v{u}")
        E(f"v_lshlrev_b32 v{s+3}, 16, v{u}")
        for k in range(4): E(f"v_mul_f32 v{s+k}, v{s+k}, v10")
        for x in (r, s):
            E(f"v_cvt_pk_bf16_f32 v{s+4}, v{x}, v{x+1}")
            E(f"v_cvt_pk_bf16_f32 v{s+5}, v{x+2}, v{x+3}")
            E(f"v_lshlrev_b32 v{x}, 16, v{s+4}")
            E(f"v_and_b32 v{x+1}, 0xffff0000, v{s+4}")
            E(f"v_lshlrev_b32 v{x+2}, 16, v{s+5}")
            E(f"v_and_b32 v{x+3}, 0xffff0000, v{s+5}")
        E(f"v_pk_add_f32 v[{r}:{r+1}], v[{r}:{r+1}], v[{s}:{s+1}]")
        E(f"v_pk_add_f32 v[{r+2}:{r+3}], v[{r+2}:{r+3}], v[{s+2}:{s+3}]")
        E(f"v_cvt_pk_bf16_f32 v{88+2*e}, v{r}, v{r+1}")
        E(f"v_cvt_pk_bf16_f32 v{89+2*e}, v{r+2}, v{r+3}")
    E("s_nop 1")
    E("v_permlane16_swap_b32 v88, v90")
    E("v_permlane16_swap_b32 v89, v91")
    E("s_nop 1")
    E("s_cmp_lg_u32 s52, 0")
    E("s_cbranch_scc1 K2C_DONE")
    stamp(E, 6)
    E("s_mov_b32 s52, 1")
    E("s_add_u32 s29, s29, 1")
    E(f"s_mov_b32 s53, {UR2}")
    E("v_mov_b32 v10, v205")
    for e in range(4): E(f"v_mov_b32 v{214+e}, v{88+e}")
    E("s_barrier")
    E("s_branch K2C_LOOP")
    E.label("K2C_DONE")
    E("v_and_b32 v12, 1, v26")
    E("v_lshlrev_b32 v12, 9, v12")
    E("v_lshl_add_u32 v12, v25, 5, v12")
    E("v_lshrrev_b32 v13, 1, v26")
    E("v_lshl_add_u32 v12, v13, 4, v12")
    E(f"buffer_store_dwordx4 v[88:91], v12, s[{SWS}:{SWS+3}], s49 offen")
    E("s_cmp_lg_u32 s54, 0")
    E("s_cbranch_scc1 K2C_FIN")
    E("s_sub_u32 s49, s49, 4096")
    E(f"buffer_store_dwordx4 v[214:217], v12, s[{SWS}:{SWS+3}], s49 offen")
    E.label("K2C_FIN")
    E("s_lshl_b32 s48, s2, 7")
    E("s_lshl_b32 s49, s28, 2")
    E("s_add_u32 s48, s48, s49")
    E(f"s_add_u32 s48, s48, {FLG}")
    stamp(E, 7)
    E("s_waitcnt vmcnt(0)")
    flag_store(E, "s48", SWS)
    for i in range(8, 12): stamp(E, i)
    stamp_flush(E, 12, SWS, 1)
    E("s_endpgm")

def gen_k2(E):
    prologue(E, "k2_kernel")
    E(f"s_cmp_ge_u32 s2, {GRID}")
    E("s_cbranch_scc1 K2_END")
    E("v_and_b32 v1, 63, v0")
    E("v_lshrrev_b32 v2, 6, v0")
    E("v_readfirstlane_b32 s28, v2")
    if os.environ.get("SWAP", "1") == "1": E("s_xor_b32 s2, s2, 256")
    E("s_cmp_ge_u32 s2, 256")
    E("s_cbranch_scc1 K2_CONV")
    gemm(E)
    E.label("K2_CONV")
    conv(E)
    E.label("K2_END")
    E("s_endpgm")
```

```python
from gen_common import *
from gen_k2 import VM, kgen, TABW
VGPR = 256
LDS = 163840
SL = 24576
W1B = 24576
SCR = 155648
PAIR = 98304
CSA = 159744

def gen_k1(E):
    prologue(E, "k1_kernel")
    SX, SW, SWS, SDB, SWO = 8, 12, 16, 20, 24
    E("s_cmp_ge_u32 s2, 256")
    E("s_cbranch_scc1 K1_END")
    load_srds(E, [("u", SX), ("win", SW), ("ws", SWS), ("dbg", SDB), ("wout", SWO), ("wsp", 4)])
    E("v_and_b32 v1, 63, v0")
    E("v_lshrrev_b32 v2, 6, v0")
    E("v_readfirstlane_b32 s28, v2")
    stamp(E, 0)
    E("s_cmp_ge_u32 s2, 224")
    E("s_cbranch_scc1 K1_AUX")
    E("s_and_b32 s33, s2, 7")
    E("s_lshr_b32 s34, s2, 3")
    E("s_lshr_b32 s29, s33, 1")
    E("s_lshl_b32 s29, s29, 2")
    E("s_and_b32 s35, s34, 3")
    E("s_add_u32 s29, s29, s35")
    E("s_and_b32 s30, s33, 1")
    E("s_mul_i32 s30, s30, 7")
    E("s_lshr_b32 s35, s34, 2")
    E("s_add_u32 s30, s30, s35")
    E("s_and_b32 s31, s28, 3")
    E("s_lshr_b32 s32, s28, 2")
    E("v_lshrrev_b32 v6, 3, v1")
    E("v_and_b32 v7, 7, v1")
    E("v_lshrrev_b32 v8, 1, v6")
    E("v_xor_b32 v9, v7, v8")
    E("v_xor_b32 v10, 4, v9")
    E("s_lshl_b32 s33, s29, 7")
    E("s_lshl_b32 s34, s28, 4")
    E("s_add_u32 s34, s34, s33")
    E("v_add_u32 v11, s34, v6")
    E("v_mul_u32_u24 v11, 896, v11")
    E("v_lshl_add_u32 v3, v9, 4, v11")
    E("v_lshl_add_u32 v4, v10, 4, v11")
    E("v_add_u32 v4, 7168, v4")
    E("v_and_b32 v9, 1, v8")
    E("v_lshlrev_b32 v9, 2, v9")
    E("v_xor_b32 v9, v7, v9")
    E("s_lshl_b32 s34, s28, 3")
    E("v_add_u32 v11, s34, v6")
    E("v_mul_u32_u24 v11, 3584, v11")
    E("v_lshl_add_u32 v5, v9, 4, v11")
    E("s_lshl_b32 s34, s30, 7")
    E("v_add_u32 v5, s34, v5")
    E("s_lshl_b32 s36, s28, 11")
    E("s_lshl_b32 s37, s28, 10")
    E("s_waitcnt lgkmcnt(0)")
    V = VM(E)
    E("v_mov_b32 v30, 0")
    E("s_lshl_b32 s49, s29, 7")
    E(f"s_add_u32 s49, s49, {TAGW}")
    E(f"buffer_load_dword v31, v30, s[{SWS}:{SWS+3}], s49 offen")
    def issue(c, parts=(0, 1, 2)):
        slot = (c % 6) * SL
        if 0 in parts:
            E(f"s_add_u32 m0, s36, {slot}")
            E(f"s_mov_b32 s40, {c*128}")
            E(f"buffer_load_dwordx4 v3, s[{SX}:{SX+3}], s40 offen lds")
        if 1 in parts:
            E(f"s_add_u32 m0, s36, {slot+1024}")
            E(f"s_mov_b32 s41, {c*229376+1792}")
            E(f"buffer_load_dwordx4 v4, s[{SX}:{SX+3}], s40 offen lds")
        if 2 in parts:
            E(f"s_add_u32 m0, s37, {slot+16384}")
            E("s_nop 0")
            E(f"buffer_load_dwordx4 v5, s[{SW}:{SW+3}], s41 offen lds")
        for _ in parts: V.issue(("S", c))
    def issue_w1(c):
        E(f"s_add_u32 m0, s37, {W1B + c*8192}")
        E(f"s_mov_b32 s42, {c*229376}")
        E(f"buffer_load_dwordx4 v5, s[{SW}:{SW+3}], s42 offen lds")
        V.issue("W1")
    NI = int(os.environ.get("NI", "4"))
    for c in range(NI): issue(c)
    E("v_and_b32 v6, 31, v1")
    E("v_lshrrev_b32 v7, 5, v1")
    E("v_bfe_u32 v8, v6, 1, 3")
    E("v_xor_b32 v8, v8, v7")
    E("s_lshl_b32 s34, s31, 5")
    E("v_add_u32 v9, s34, v6")
    E("v_lshlrev_b32 v9, 7, v9")
    E("v_lshl_add_u32 v12, v8, 4, v9")
    E("s_lshl_b32 s45, s32, 1")
    E("s_xor_b32 s45, s45, s31")
    E("s_lshl_b32 s34, s45, 5")
    E("v_xor_b32 v12, s34, v12")
    for j in range(1, 4): E(f"v_xor_b32 v{12+j}, {32*j}, v12")
    for j in range(4): E(f"v_add_u32 v{16+j}, {3*SL}, v{12+j}")
    E("v_bfe_u32 v8, v1, 2, 2")
    E("v_lshl_add_u32 v9, v7, 3, v8")
    E("v_lshlrev_b32 v9, 7, v9")
    E("v_bfe_u32 v10, v1, 4, 1")
    E("v_lshlrev_b32 v10, 1, v10")
    E("v_bfe_u32 v11, v1, 1, 1")
    E("v_add_u32 v10, v10, v11")
    E("s_lshl_b32 s34, s32, 2")
    E("v_add_u32 v10, s34, v10")
    E("v_lshrrev_b32 v8, 1, v8")
    E("v_lshlrev_b32 v8, 2, v8")
    E("v_xor_b32 v10, v10, v8")
    E("v_lshl_add_u32 v9, v10, 4, v9")
    E("v_and_b32 v11, 1, v1")
    E("v_lshl_add_u32 v20, v11, 3, v9")
    E(f"v_add_u32 v25, {W1B}, v20")
    E("v_add_u32 v20, 16384, v20")
    E(f"v_add_u32 v21, {3*SL}, v20")
    E("s_lshl_b32 s43, s31, 1")
    E("s_add_u32 s43, s43, s32")
    E("v_bfe_u32 v8, v1, 2, 2")
    E("v_bfe_u32 v10, v1, 4, 1")
    E("v_lshl_add_u32 v8, v10, 3, v8")
    E("s_and_b32 s34, s30, 1")
    E("s_lshl_b32 s34, s34, 2")
    E("v_lshrrev_b32 v10, 5, v1")
    E("v_lshlrev_b32 v10, 1, v10")
    E("v_bfe_u32 v11, v1, 1, 1")
    E("v_add3_u32 v10, v10, v11, s34")
    E("v_lshrrev_b32 v11, 1, v8")
    E("v_xor_b32 v10, v10, v11")
    E("v_lshlrev_b32 v8, 7, v8")
    E("v_lshl_add_u32 v8, v10, 4, v8")
    E("v_and_b32 v11, 1, v1")
    E("v_lshl_add_u32 v8, v11, 3, v8")
    E("s_lshr_b32 s38, s30, 1")
    E("s_cmp_eq_u32 s38, 6")
    E("s_cselect_b32 s34, 0, s38")
    E(f"s_mul_i32 s34, s34, {SL}")
    E("s_lshl_b32 s35, s43, 11")
    E("s_add_u32 s34, s34, s35")
    E("v_xor_b32 v23, 32, v8")
    E("v_add_u32 v22, s34, v8")
    E("v_add_u32 v23, s34, v23")
    E("v_add_u32 v23, 512, v23")
    E("v_lshlrev_b32 v24, 4, v1")
    E("v_mov_b32 v30, 0")
    E("s_mov_b32 s44, 0x3f803f80")
    ACC2, ACC1, XF, WFR = 32, 48, 64, 176
    SSUM, SSQ, SC2, SC1 = 208, 212, 216, 220
    XG = 26
    for r in range(208, 224): E(f"v_mov_b32 v{r}, 0")
    E("v_lshrrev_b32 v6, 2, v1")
    E("v_lshrrev_b32 v7, 4, v1")
    E("v_xor_b32 v6, v6, v7")
    E("v_and_b32 v6, 1, v6")
    E("v_add_u32 v6, -1, v6")
    for r in range(232, 236): E(f"v_and_b32 v{r}, s44, v6")
    E(f"v_mov_b32 v242, {f32hex(GELU_K1)}")
    E(f"v_mov_b32 v243, {f32hex(GELU_K2)}")
    E("v_mov_b32 v244, 1.0")
    E("v_mov_b32 v245, 1.0")
    E("s_lshl_b32 s34, s28, 9")
    E(f"s_add_u32 s34, s34, {SCR}")
    E("v_and_b32 v6, 31, v1")
    E("v_lshl_add_u32 v246, v6, 3, s34")
    E("v_bfe_u32 v7, v1, 4, 1")
    E("s_lshl_b32 s35, s32, 7")
    E("s_add_u32 s34, s34, s35")
    E("v_lshl_add_u32 v249, v7, 6, s34")
    E("s_lshl_b32 s34, s31, 8")
    E(f"s_add_u32 s34, s34, {PAIR}")
    E("v_lshl_add_u32 v250, v6, 3, s34")
    E("s_lshl_b32 s34, s32, 9")
    E(f"s_add_u32 s34, s34, {CSA}")
    E("v_and_b32 v6, 31, v1")
    E("v_lshl_add_u32 v255, v6, 4, s34")
    E("s_lshl_b32 s35, s31, 2")
    E("v_add_u32 v254, s35, v255")
    E("s_lshl_b32 s34, s31, 9")
    E(f"s_add_u32 s34, s34, {CSA + 2048}")
    E("v_lshl_add_u32 v247, v6, 4, s34")
    E("s_lshl_b32 s35, s32, 3")
    E("v_add_u32 v251, s35, v247")
    E("s_lshl_b32 s34, s28, 9")
    E(f"s_add_u32 s34, s34, {SCR + 256}")
    E("v_lshl_add_u32 v252, v6, 2, s34")
    E("v_lshrrev_b32 v7, 5, v1")
    E("v_lshl_add_u32 v253, v7, 4, s34")
    for j in range(4):
        E(f"s_xor_b32 s34, s45, {j}")
        E("s_lshl_b32 s34, s34, 11")
        E(f"v_add_u32 v{6+j}, s34, v20")
        E(f"v_add_u32 v{236+j}, s34, v21")
    def reads(c):
        slot = c % 6; hi = slot >= 3; so = (slot % 3) * SL
        for j in range(4):
            a = (16 if hi else 12) + j; b = (236 if hi else 6) + j; x = XF + 16 * c + 4 * j; f = WFR + 16 * (c & 1) + 4 * j
            E(f"ds_read_b128 v[{x}:{x+3}], v{a} offset:{so}")
            for h in range(2):
                E(f"ds_read_b64_tr_b16 v[{f+2*h}:{f+1+2*h}], v{b} offset:{so + h*512}")
    def mm(c, j):
        x = XF + 16 * c + 4 * j; f = WFR + 16 * (c & 1) + 4 * j
        c2 = "0" if (c == 0 and j == 0) else f"v[{ACC2}:{ACC2+15}]"
        E(f"v_mfma_f32_32x32x16_bf16 v[{ACC2}:{ACC2+15}], v[{f}:{f+3}], v[{x}:{x+3}], {c2}")
        xs = XF + 16 * c + 4 * (j >> 1) + 2 * (j & 1)
        for k in range(2):
            E(f"v_lshlrev_b32 v{224+2*k}, 16, v{xs+k}")
            E(f"v_and_b32 v{225+2*k}, 0xffff0000, v{xs+k}")
        if j < 2: E(f"v_mfma_f32_16x16x32_bf16 v[{SSUM}:{SSUM+3}], v[232:235], v[{x}:{x+3}], v[{SSUM}:{SSUM+3}]")
        if j == 2:
            f0 = WFR + 16 * (c & 1)
            E(f"v_mfma_f32_16x16x32_bf16 v[{SC2}:{SC2+3}], v[232:235], v[{f0}:{f0+3}], v[{SC2}:{SC2+3}]")
        for k in range(4): E(f"v_fmac_f32 v{SSQ+k}, v{224+k}, v{224+k}")
    w1n = [0]
    for i in range(8):
        if i < 7:
            V.wait(("S", i))
            E("s_waitcnt lgkmcnt(0)")
            E("s_barrier")
            if i in (0, 3, 6): stamp(E, {0: 1, 3: 2, 6: 3}[i])
            E(f"s_cmp_lg_u32 s38, {i}")
            E(f"s_cbranch_scc1 K1_NOGRAB{i}")
            E(f"ds_read_b64_tr_b16 v[{XG}:{XG+1}], v22")
            E(f"ds_read_b64_tr_b16 v[{XG+2}:{XG+3}], v23")
            E.label(f"K1_NOGRAB{i}")
            reads(i)
        else:
            E("s_waitcnt lgkmcnt(0)")
        if i == 0:
            for c in range(NI, 6): issue(c)
            continue
        for j in range(4):
            mm(i - 1, j)
            if i == 1 and j < 3: issue(6, (j,))
            if i in (2, 3, 4) and j < 3 and w1n[0] < 7: issue_w1(w1n[0]); w1n[0] += 1
            if i == 5 and j == 3:
                E("s_lshl_b32 s34, s2, 3")
                E("s_add_u32 s34, s34, s28")
                E("s_mul_i32 s34, s34, 4736")
                E("v_min_u32 v4, 36, v1")
                E("v_lshlrev_b32 v4, 7, v4")
                E("buffer_load_dword v4, v4, s[4:7], s34 offen")
                V.issue("pf")
    stamp(E, 4)
    def red4(r):
        E(f"v_add_f32 v{r}, v{r}, v{r+1}")
        E(f"v_add_f32 v{r+2}, v{r+2}, v{r+3}")
        E(f"v_add_f32 v{r}, v{r}, v{r+2}")
        E(f"v_mov_b32 v{r+1}, v{r}")
        E(f"v_permlane32_swap_b32 v{r}, v{r+1}")
        E(f"v_add_f32 v{r}, v{r}, v{r+1}")
    red4(SSQ)
    E(f"v_mov_b32 v{SSUM+1}, v{SSQ}")
    E(f"ds_write_b64 v251, v[{SSUM}:{SSUM+1}]")
    E(f"ds_write_b32 v254, v{SC2} offset:1024")
    for j in range(4): E(f"v_add_u32 v{6+j}, {W1B - 16384}, v{6+j}")
    E("s_waitcnt lgkmcnt(0)")
    E("s_barrier")
    CS, T = 176, 192
    E("ds_read_b128 v[224:227], v255 offset:1024")
    E("ds_read_b128 v[228:231], v247")
    E("s_waitcnt lgkmcnt(1)")
    E("v_add_f32 v224, v224, v225")
    E("v_add_f32 v226, v226, v227")
    E("v_add_f32 v224, v224, v226")
    E("ds_write_b32 v252, v224")
    for o in range(4): E(f"ds_read_b128 v[{CS+4*o}:{CS+4*o+3}], v253 offset:{32*o}")
    E("s_waitcnt lgkmcnt(5)")
    E("v_add_f32 v240, v228, v230")
    E("v_add_f32 v241, v229, v231")
    def ln_stats(m, q, n):
        E(f"v_mul_f32 v{m}, {f32hex(1.0/n)}, v{m}")
        E(f"v_mul_f32 v{q}, {f32hex(1.0/n)}, v{q}")
        E(f"v_fma_f32 v{q}, -v{m}, v{m}, v{q}")
        E(f"v_max_f32 v{q}, 0, v{q}")
        bf16r(E, f"v{m}", f"v{m}"); bf16r(E, f"v{q}", f"v{q}")
        E(f"v_add_f32 v{q}, {f32hex(1e-5)}, v{q}")
        bf16r(E, f"v{q}", f"v{q}")
        E(f"v_sqrt_f32 v{q}, v{q}")
        bf16r(E, f"v{q}", f"v{q}")
        E(f"v_rcp_f32 v{q}, v{q}")
    ln_stats(240, 241, 448)
    E("ds_write_b64 v246, v[240:241]")
    def gelu_block(acc, CS=176):
        P = lambda r: f"v[{r}:{r+1}]"
        idx = range(0, 16, 2)
        for i in idx: E(f"v_pk_fma_f32 {P(acc+i)}, {P(CS+i)}, v[240:241], {P(acc+i)} op_sel:[0,0,0] op_sel_hi:[1,0,1] neg_lo:[1,0,0] neg_hi:[1,0,0]")
        for i in idx: E(f"v_pk_mul_f32 {P(acc+i)}, {P(acc+i)}, v[240:241] op_sel:[0,1] op_sel_hi:[1,1]")
        for i in idx: E(f"v_pk_mul_f32 {P(T+i)}, {P(acc+i)}, {P(acc+i)}")
        for i in idx: E(f"v_pk_fma_f32 {P(T+i)}, {P(T+i)}, v[242:243], v[242:243] op_sel:[0,1,0] op_sel_hi:[1,1,0]")
        for i in idx: E(f"v_pk_mul_f32 {P(T+i)}, {P(T+i)}, {P(acc+i)}")
        for i in range(16): E(f"v_exp_f32 v{T+i}, v{T+i}")
        for i in idx: E(f"v_pk_add_f32 {P(T+i)}, {P(T+i)}, v[244:245]")
        for i in range(16): E(f"v_rcp_f32 v{T+i}, v{T+i}")
        for i in idx: E(f"v_pk_mul_f32 {P(acc+i)}, {P(acc+i)}, {P(T+i)}")
    E("s_waitcnt lgkmcnt(1)")
    gelu_block(ACC2)
    E(f"v_pk_add_f32 v[224:225], v[{ACC2}:{ACC2+1}], v[{ACC2+2}:{ACC2+3}]")
    E(f"v_pk_mul_f32 v[226:227], v[{ACC2}:{ACC2+1}], v[{ACC2}:{ACC2+1}]")
    E(f"v_pk_add_f32 v[228:229], v[{ACC2+4}:{ACC2+5}], v[{ACC2+6}:{ACC2+7}]")
    E(f"v_pk_mul_f32 v[230:231], v[{ACC2+2}:{ACC2+3}], v[{ACC2+2}:{ACC2+3}]")
    for i in range(4, 16, 2):
        q = 226 + 4 * ((i >> 1) & 1)
        E(f"v_pk_fma_f32 v[{q}:{q+1}], v[{ACC2+i}:{ACC2+i+1}], v[{ACC2+i}:{ACC2+i+1}], v[{q}:{q+1}]")
        if i >= 8:
            sr = 224 + 4 * ((i >> 1) & 1)
            E(f"v_pk_add_f32 v[{sr}:{sr+1}], v[{sr}:{sr+1}], v[{ACC2+i}:{ACC2+i+1}]")
    E("v_pk_add_f32 v[224:225], v[224:225], v[228:229]")
    E("v_pk_add_f32 v[226:227], v[226:227], v[230:231]")
    E("v_add_f32 v224, v224, v225")
    E("v_add_f32 v225, v226, v227")
    E("v_mov_b32 v226, v224")
    E("v_mov_b32 v227, v225")
    E("v_permlane32_swap_b32 v224, v226")
    E("v_permlane32_swap_b32 v225, v227")
    E("v_pk_add_f32 v[224:225], v[224:225], v[226:227]")
    E("s_cmp_eq_u32 s32, 0")
    E("s_cbranch_scc1 K1_NOPW")
    E("ds_write_b64 v250, v[224:225]")
    E.label("K1_NOPW")
    V.wait("W1")
    E("v_add_u32 v31, 1, v31")
    E("s_waitcnt lgkmcnt(0)")
    stamp(E, 5)
    E("s_barrier")
    E("ds_read_b64 v[228:229], v250")
    E("s_lshl_b32 s34, s29, 2")
    E("s_add_u32 s39, s34, s31")
    E("s_mul_i32 s34, s39, 7168")
    E(f"s_add_u32 s47, s34, {PST}")
    E("s_lshl_b32 s35, s30, 1")
    E("s_add_u32 s48, s35, s32")
    E("s_lshl_b32 s35, s30, 9")
    E("s_add_u32 s34, s47, s35")
    order = [4 * c for c in range(7)] + [k for k in range(28) if k % 4]
    def w1reads(i):
        f = WFR + 4 * (i % 8); ks = order[i]
        for h in range(2):
            E(f"ds_read_b64_tr_b16 v[{f+2*h}:{f+1+2*h}], v{6 + (ks & 3)} offset:{(ks >> 2)*8192 + h*512}")
    for ks in range(6): w1reads(ks)
    E("s_cmp_lg_u32 s32, 0")
    E("s_cbranch_scc1 K1_NOPUB")
    E("s_waitcnt lgkmcnt(12)")
    E("v_add_f32 v224, v224, v228")
    E("v_add_f32 v226, v225, v229")
    E("v_mov_b32 v225, v31")
    E("v_mov_b32 v227, v31")
    E("s_mov_b32 exec_hi, 0")
    E(f"buffer_store_dwordx4 v[224:227], v24, s[{SWS}:{SWS+3}], s34 offen sc1")
    E("s_mov_b64 exec, -1")
    E.label("K1_NOPUB")
    stamp(E, 6)
    lq = [("w", k) for k in range(6) for _ in range(2)]
    def lwait(tag):
        idx = max(i for i, t in enumerate(lq) if t == tag)
        E(f"s_waitcnt lgkmcnt({min(15, len(lq) - 1 - idx)})")
    XW = 224
    for ks in range(28):
        lwait(("w", ks))
        x = XF + 4 * order[ks]; f = WFR + 4 * (ks % 8)
        c1 = "0" if ks == 0 else f"v[{ACC1}:{ACC1+15}]"
        E(f"v_mfma_f32_32x32x16_bf16 v[{ACC1}:{ACC1+15}], v[{f}:{f+3}], v[{x}:{x+3}], {c1}")
        if ks + 6 < 28: w1reads(ks + 6); lq += [("w", ks + 6)] * 2
        if ks < 7:
            E(f"v_mfma_f32_16x16x32_bf16 v[{SC1}:{SC1+3}], v[232:235], v[{f}:{f+3}], v[{SC1}:{SC1+3}]")
        if ks == 9:
            E(f"ds_write_b32 v254, v{SC1}")
            lq.append("a")
        if ks == 18:
            lwait("a")
            E("s_barrier")
            E("ds_read_b128 v[224:227], v255")
            lq.append("b")
        if ks == 22:
            lwait("b")
            E("v_add_f32 v224, v224, v225")
            E("v_add_f32 v226, v226, v227")
            E("v_add_f32 v224, v224, v226")
            E("ds_write_b32 v252, v224")
            for o in range(4): E(f"ds_read_b128 v[{208+4*o}:{211+4*o}], v253 offset:{32*o}")
            lq += ["c"] * 5
    for o in range(4): E(f"ds_read_b128 v[{148+4*o}:{151+4*o}], v249 offset:{16*o}")
    E("s_mov_b32 s46, 0")
    E("s_add_u32 s53, s47, 4096")
    GR = 112
    def ld_gran():
        for i in range(7):
            E(f"buffer_load_dwordx4 v[{GR+4*i}:{GR+4*i+3}], v24, s[{SWS}:{SWS+3}], s{47 if i < 4 else 53} offen offset:{1024*(i%4)} sc1")
    stamp(E, 7)
    ld_gran()
    E("s_waitcnt lgkmcnt(4)")
    gelu_block(ACC1, 208)
    for o in range(4):
        d = 64 + 4 * (o & 1) + 2 * (o >> 1)
        E(f"v_cvt_pk_bf16_f32 v{d}, v{ACC1+4*o}, v{ACC1+4*o+1}")
        E(f"v_cvt_pk_bf16_f32 v{d+1}, v{ACC1+4*o+2}, v{ACC1+4*o+3}")
    E("v_bfe_u32 v2, v1, 4, 1")
    E("v_mul_u32_u24 v2, 28672, v2")
    E("v_lshrrev_b32 v7, 5, v1")
    E("v_lshl_add_u32 v2, v7, 8, v2")
    E("v_and_b32 v7, 15, v1")
    E("v_lshl_add_u32 v2, v7, 4, v2")
    E("s_mul_i32 s34, s39, 57344")
    E("s_lshl_b32 s35, s48, 10")
    E("s_add_u32 s34, s34, s35")
    E(f"s_add_u32 s54, s34, {Z1F}")
    E("s_waitcnt lgkmcnt(0)")
    for i in range(8):
        src = XG + i // 2
        if i & 1: E(f"v_and_b32 v{72+i}, 0xffff0000, v{src}")
        else: E(f"v_lshlrev_b32 v{72+i}, 16, v{src}")
    for i in range(8): E(f"v_sub_f32 v{72+i}, v{72+i}, v{148+2*i}")
    for i in range(0, 8, 2): E(f"v_cvt_pk_bf16_f32 v{84+i//2}, v{72+i}, v{73+i}")
    for i in range(8):
        src = 84 + i // 2
        if i & 1: E(f"v_and_b32 v{72+i}, 0xffff0000, v{src}")
        else: E(f"v_lshlrev_b32 v{72+i}, 16, v{src}")
    for i in range(8): E(f"v_mul_f32 v{72+i}, v{72+i}, v{149+2*i}")
    for i in range(4): E(f"v_cvt_pk_bf16_f32 v{84+i}, v{79-2*i}, v{78-2*i}")
    E("v_lshrrev_b32 v3, 5, v1")
    E("v_and_b32 v7, 15, v1")
    E("v_lshl_add_u32 v3, v3, 4, v7")
    E(f"v_mul_u32_u24 v3, {XS}, v3")
    E("v_bfe_u32 v7, v1, 4, 1")
    E("v_lshlrev_b32 v7, 4, v7")
    E("v_sub_u32 v3, v3, v7")
    E("v_add_u32 v3, 16, v3")
    E("s_lshl_b32 s34, s43, 4")
    E("s_add_u32 s34, s34, s33")
    E("s_sub_u32 s34, 2032, s34")
    E("s_lshl_b32 s34, s34, 1")
    E(f"s_mul_i32 s35, s30, {32*XS}")
    E("s_add_u32 s34, s34, s35")
    E(f"s_add_u32 s55, s34, {XNT}")
    E("v_and_b32 v6, 31, v1")
    E("v_mul_u32_u24 v6, 72, v6")
    E("v_lshrrev_b32 v7, 5, v1")
    E("v_lshl_add_u32 v6, v7, 3, v6")
    E("s_mul_i32 s34, s28, 2304")
    E("v_add_u32 v6, s34, v6")
    E("v_lshrrev_b32 v7, 4, v1")
    E("v_bfe_u32 v8, v1, 2, 2")
    E("v_lshl_add_u32 v7, v7, 3, v8")
    E("v_mul_u32_u24 v7, 72, v7")
    E("v_and_b32 v8, 3, v1")
    E("v_lshl_add_u32 v7, v8, 3, v7")
    E("v_add_u32 v7, s34, v7")
    for a in range(2):
        E("s_lshl_b32 s34, s48, 1")
        E(f"s_add_u32 s34, s34, {a}")
        E("s_mul_i32 s35, s34, 37")
        E("s_lshr_b32 s35, s35, 8")
        E("s_mul_i32 s40, s35, 7")
        E("s_sub_u32 s34, s34, s40")
        E("s_lshl_b32 s35, s35, 6")
        E("s_add_u32 s35, s35, s39")
        E("s_mul_i32 s35, s35, 7")
        E("s_add_u32 s34, s34, s35")
        E(f"s_lshl_b32 s{50+a}, s34, 10")
    stamp(E, 8)
    E.label("K1_POLL2")
    E("s_waitcnt vmcnt(0)")
    E("v_mov_b32 v8, 0")
    for i in range(7):
        E(f"v_xor_b32 v{GR+4*i+1}, v31, v{GR+4*i+1}")
        E(f"v_xor_b32 v{GR+4*i+3}, v31, v{GR+4*i+3}")
        E(f"v_or3_b32 v8, v8, v{GR+4*i+1}, v{GR+4*i+3}")
    E("v_cmp_ne_u32 vcc, 0, v8")
    E("s_nop 4")
    E("s_cbranch_vccz K1_POLL2_OK")
    E("s_sleep 1")
    ld_gran()
    E("s_add_u32 s46, s46, 1")
    E("s_cmp_lt_u32 s46, 0x40000")
    E("s_cbranch_scc1 K1_POLL2")
    E("s_waitcnt vmcnt(0)")
    E.label("K1_POLL2_OK")
    stamp(E, 9)
    E("s_or_b32 s34, s30, s28")
    E("s_cmp_lg_u32 s34, 0")
    E("s_cbranch_scc1 K1_NOTAGW")
    E("s_mov_b64 exec, 1")
    E(f"buffer_store_dword v31, v30, s[{SWS}:{SWS+3}], s49 offen sc1")
    E("s_mov_b64 exec, -1")
    E.label("K1_NOTAGW")
    E(f"buffer_store_dwordx4 v[64:67], v2, s[{SWS}:{SWS+3}], s54 offen")
    E(f"buffer_store_dwordx4 v[68:71], v2, s[{SWS}:{SWS+3}], s54 offen offset:512")
    E(f"buffer_store_dwordx4 v[84:87], v3, s[{SWS}:{SWS+3}], s55 offen{XNOSC}")
    regs = [GR + 4 * i for i in range(7)]
    while len(regs) > 1:
        nxt = []
        for i in range(0, len(regs) - 1, 2):
            E(f"v_add_f32 v{regs[i]}, v{regs[i]}, v{regs[i+1]}")
            E(f"v_add_f32 v{regs[i]+2}, v{regs[i]+2}, v{regs[i+1]+2}")
            nxt.append(regs[i])
        if len(regs) & 1: nxt.append(regs[-1])
        regs = nxt
    E("v_mov_b32 v116, v112")
    E("v_mov_b32 v117, v114")
    E("v_mov_b32 v118, v116")
    E("v_mov_b32 v119, v117")
    E("v_permlane32_swap_b32 v116, v118")
    E("v_permlane32_swap_b32 v117, v119")
    E("v_add_f32 v116, v116, v118")
    E("v_add_f32 v117, v117, v119")
    ln_stats(116, 117, 896)
    E("v_mul_f32 v116, v116, v117")
    for i in range(0, 16, 2):
        E(f"v_pk_fma_f32 v[{ACC2+i}:{ACC2+i+1}], v[{ACC2+i}:{ACC2+i+1}], v[116:117], v[116:117] op_sel:[0,1,0] op_sel_hi:[1,1,0] neg_lo:[0,0,1] neg_hi:[0,0,1]")
    for i in range(8): E(f"v_cvt_pk_bf16_f32 v{96+i}, v{ACC2+2*i}, v{ACC2+2*i+1}")
    for o in range(4): E(f"ds_write_b64 v6, v[{96+2*o}:{97+2*o}] offset:{16*o}")
    E("s_waitcnt lgkmcnt(0)")
    for a in range(2):
        for h in range(2):
            E(f"ds_read_b64_tr_b16 v[{104+4*a+2*h}:{105+4*a+2*h}], v7 offset:{288*h+32*a}")
    E("s_waitcnt lgkmcnt(2)")
    E(f"buffer_store_dwordx4 v[104:107], v24, s[{SWS}:{SWS+3}], s50 offen")
    E("s_waitcnt lgkmcnt(0)")
    E(f"buffer_store_dwordx4 v[108:111], v24, s[{SWS}:{SWS+3}], s51 offen")
    stamp(E, 10)
    stamp_flush(E, 11, SWS, 0)
    E("s_endpgm")

    E.label("K1_AUX")
    WOFB, GS = 132352, 66176
    E("s_sub_u32 s29, s2, 224")
    E("s_waitcnt lgkmcnt(0)")
    load_srds(E, [("lar", 32), ("aim", 36), ("cre", 40), ("cim", 44), ("ldt", 8)])
    E("v_mov_b32 v30, 0")
    E("v_lshlrev_b32 v3, 4, v1")
    E("s_mul_i32 s56, s29, 28672")
    E("s_lshl_b32 s57, s28, 10")
    E("s_add_u32 s56, s56, s57")
    E("s_and_b32 s30, s28, 3")
    E("s_lshr_b32 s31, s28, 2")
    E(f"s_mul_i32 s12, s31, {GS}")
    E("v_and_b32 v2, 255, v0")
    E("v_lshlrev_b32 v4, 4, v2")
    E("v_lshlrev_b32 v2, 1, v2")
    E("s_mul_i32 s13, s29, 6")
    E("s_add_u32 s13, s13, s31")
    E("v_and_b32 v25, 15, v1")
    E("v_lshrrev_b32 v26, 4, v1")
    E("s_waitcnt lgkmcnt(0)")
    for r in range(3):
        E(f"s_add_u32 s48, s13, {2*r}")
        E("s_lshl_b32 s49, s48, 2")
        E("s_add_u32 s49, s49, 2")
        E("s_lshl_b32 s48, s49, 8")
        E(f"buffer_load_ushort v{216+r}, v30, s[8:11], s49 offen")
        for k, sr in enumerate((32, 36, 40, 44)):
            E(f"buffer_load_ushort v{200+4*r+k}, v2, s[{sr}:{sr+3}], s48 offen")
    E("s_lshl_b32 s50, s29, 3")
    E("s_add_u32 s50, s50, s28")
    E("s_mul_i32 s51, s50, 896")
    E("s_lshl_b32 s50, s50, 15")
    E("v_lshlrev_b32 v22, 7, v1")
    E("v_min_u32 v23, 6, v1")
    E("v_lshlrev_b32 v23, 7, v23")
    E(f"v_add_u32 v24, {4*TABW}, v4")
    E("v_add_u32 v24, s12, v24")
    E("s_mov_b32 s15, 0")
    E("s_waitcnt vmcnt(10)")
    stamp(E, 1)
    for k, sr in enumerate((32, 36, 40, 44)):
        E(f"buffer_load_dword v{16+k}, v23, s[{sr}:{sr+3}], s51 offen")
    for i in range(3):
        E(f"s_add_u32 m0, s57, {WOFB + 8192*i}")
        E(f"s_add_u32 s48, s56, {8192*i}")
        E(f"buffer_load_dwordx4 v3, s[{SWO}:{SWO+3}], s48 offen lds")
    for k in range(4): E(f"v_mov_b32 v{220+k}, 0")
    E("v_lshlrev_b32 v224, 4, v1")
    E("s_lshr_b32 s48, s50, 5")
    E(f"s_add_u32 s48, s48, {FLG}")
    E(f"buffer_store_dwordx4 v[220:223], v224, s[{SWS}:{SWS+3}], s48 offen sc1")
    E("s_waitcnt vmcnt(8)")
    E("s_cmp_lg_u32 s31, 0")
    E("s_cbranch_scc1 K1A_LOOP")
    E(f"s_add_u32 m0, s57, {WOFB + 8192*3}")
    E(f"s_add_u32 s48, s56, {8192*3}")
    E(f"buffer_load_dwordx4 v3, s[{SWO}:{SWO+3}], s48 offen lds")
    E.label("K1A_LOOP")
    for k in range(4): E(f"v_mov_b32 v{5+k}, v{200+k}")
    E("v_lshlrev_b32 v9, 16, v216")
    for k in range(8): E(f"v_mov_b32 v{200+k}, v{204+k}")
    for k in range(2): E(f"v_mov_b32 v{216+k}, v{217+k}")
    stamp(E, 3)
    kgen(E, "K1A", "s30", "s12", 4 * TABW, stamps=4)
    E("s_cmp_lg_u32 s15, 1")
    E("s_cbranch_scc1 K1A_NOWOF")
    E("s_cmp_ge_u32 s29, 28")
    E("s_cbranch_scc1 K1A_NOWOF")
    E("v_lshrrev_b32 v225, 2, v1")
    E("v_mul_u32_u24 v225, 896, v225")
    E("v_and_b32 v226, 3, v1")
    E("v_lshl_add_u32 v225, v226, 4, v225")
    E("s_lshr_b32 s48, s30, 1")
    E("s_lshl_b32 s48, s48, 6")
    E("s_and_b32 s49, s30, 1")
    E("s_lshl_b32 s49, s49, 3")
    E("s_add_u32 s48, s48, s49")
    E("s_mul_i32 s49, s31, 384")
    E("s_add_u32 s48, s48, s49")
    E(f"s_add_u32 s48, s48, {WOFB}")
    E("v_add_u32 v225, s48, v225")
    for i in range(4):
        E(f"ds_read_b64_tr_b16 v[{228+4*i}:{229+4*i}], v225 offset:{128*i}")
        E(f"ds_read_b64_tr_b16 v[{230+4*i}:{231+4*i}], v225 offset:{128*i + 16*896}")
    E("s_mul_i32 s48, s30, 28672")
    E("s_lshl_b32 s49, s29, 10")
    E("s_add_u32 s48, s48, s49")
    E(f"s_mul_i32 s49, s31, {3*114688}")
    E("s_add_u32 s48, s48, s49")
    for i in range(4):
        E(f"s_add_u32 s49, s48, {WOF + i*114688}")
        E(f"s_waitcnt lgkmcnt({6 - 2*i})")
        E(f"buffer_store_dwordx4 v[{228+4*i}:{231+4*i}], v3, s[{SWS}:{SWS+3}], s49 offen")
    E("s_branch K1A_W2")
    E.label("K1A_NOWOF")
    E("s_waitcnt vmcnt(0)")
    E.label("K1A_W2")
    E("ds_read_b128 v[32:35], v24")
    E("s_lshl_b32 s48, s13, 12")
    E(f"s_add_u32 s48, s48, {KPG}")
    E("s_add_u32 s13, s13, 2")
    E("s_add_u32 s15, s15, 1")
    E("s_cmp_lt_u32 s15, 3")
    E("s_waitcnt lgkmcnt(0)")
    E(f"buffer_store_dwordx4 v[32:35], v4, s[{SWS}:{SWS+3}], s48 offen")
    E("s_cbranch_scc1 K1A_LOOP")
    stamp(E, 2)
    if STAMPS:
        for i in range(9, 11): stamp(E, i)
        stamp_flush(E, 11, SWS, 0)
    E.label("K1_END")
    E("s_endpgm")
```

```python
from gen_common import *
import math
VGPR = 256
GRID = 512
LDS = 81920
DBG3 = os.environ.get("DBG3", "0") == "1"
HSC = os.environ.get("HSC", " sc1")
XMAP = os.environ.get("XMAP", "0") == "1"
RERD = os.environ.get("RERD", "0") == "1"
PACE = int(os.environ.get("PACE", "12"))

class VM:
    def __init__(s, E): s.E = E; s.q = []; s.done = 0
    def issue(s, tag): s.q.append(tag)
    def wait(s, tag):
        idx = max(i for i, t in enumerate(s.q) if t == tag)
        if idx < s.done: return
        n = len(s.q) - 1 - idx
        assert n < 64
        s.E(f"s_waitcnt vmcnt({n})"); s.done = idx + 1

def gemm(E):
    SWSP, SWS, SB = 8, 12, 16
    SX, SO = 20, 24
    load_srds(E, [("wsp", SWSP), ("ws", SWS), ("bsp", SB), ("u", SX), ("out", SO)])
    stamp(E, 0)
    E("s_and_b32 s48, s2, 7")
    E("s_lshr_b32 s49, s2, 3")
    E("s_lshr_b32 s29, s48, 1")
    E("s_lshl_b32 s29, s29, 3")
    E("s_and_b32 s50, s49, 7")
    E("s_add_u32 s29, s29, s50")
    E("s_and_b32 s30, s48, 1")
    E("s_lshl_b32 s30, s30, 2")
    E("s_lshr_b32 s50, s49, 3")
    E("s_add_u32 s30, s30, s50")
    if XMAP:
        E("s_lshl_b32 s29, s48, 2")
        E("s_and_b32 s50, s49, 3")
        E("s_add_u32 s29, s29, s50")
        E("s_lshr_b32 s30, s49, 2")
    E("v_lshrrev_b32 v8, 3, v1")
    E("v_and_b32 v9, 7, v1")
    E("v_lshrrev_b32 v10, 4, v1")
    E("v_xor_b32 v9, v9, v10")
    E("v_lshlrev_b32 v8, 12, v8")
    E("v_lshl_add_u32 v2, v9, 4, v8")
    E("v_xor_b32 v3, 64, v2")
    E("s_lshl_b32 s48, s29, 18")
    E("s_lshl_b32 s49, s28, 10")
    E("s_add_u32 s48, s48, s49")
    E("s_lshl_b32 s49, s28, 1")
    for q in range(8):
        E(f"s_xor_b32 s50, s49, {q}")
        E("s_lshl_b32 s50, s50, 15")
        E(f"s_add_u32 s{32+q}, s48, s50")
    E("s_lshl_b32 s31, s28, 14")
    E("v_lshlrev_b32 v6, 4, v1")
    E("v_add_u32 v7, 4096, v6")
    E("s_lshl_b32 s40, s30, 6")
    E("s_lshl_b32 s49, s28, 4")
    E("s_add_u32 s40, s40, s49")
    E("s_mul_i32 s40, s40, 7168")
    E("s_and_b32 s44, s30, 1")
    E("s_lshl_b32 s45, s44, 10")
    E("v_add_u32 v14, s45, v6")
    E("v_add_u32 v15, 4096, v14")
    E("s_cmp_eq_u32 s44, 0")
    E("s_cselect_b32 s45, 6144, 0")
    E("v_add_u32 v244, s45, v6")
    V = VM(E)
    ACC, ZB, WF = 16, 128, 212
    E("s_waitcnt lgkmcnt(0)")
    def wdma(kp, q):
        E(f"s_add_u32 m0, s31, {(kp & 1) * 8192 + q * 1024}")
        E(f"buffer_load_dwordx4 v{2 + (q & 1)}, s[{SWSP}:{SWSP+3}], s{32+q} offen lds")
        V.issue(("W", kp))
        if q == 7:
            E("v_add_u32 v2, 128, v2")
            E("v_add_u32 v3, 128, v3")
    def zbase(ks): E(f"s_add_u32 s41, s40, {ks * 7168}")
    def zld(ks, a):
        r = ZB + 28 * (ks % 3) + 4 * a
        if a < 6: E(f"buffer_load_dwordx4 v[{r}:{r+3}], v{14 + (a >> 2)}, s[{SWS}:{SWS+3}], s41 offen offset:{(a & 3) * 1024}")
        else: E(f"buffer_load_dwordx4 v[{r}:{r+3}], v244, s[{SWS}:{SWS+3}], s41 offen")
        V.issue(("Z", ks, a))
    for q in range(8): wdma(0, q)
    zbase(0)
    for a in range(7): zld(0, a)
    zbase(1)
    for a in range(7): zld(1, a)
    for q in range(8): wdma(1, q)
    ZD = int(os.environ.get("ZD", "3"))
    if ZD == 3:
        zbase(2)
        for a in range(7): zld(2, a)
    E("v_and_b32 v8, 15, v1")
    E("v_bfe_u32 v9, v1, 1, 3")
    E("v_xor_b32 v9, v9, v10")
    E("v_lshlrev_b32 v8, 7, v8")
    E("v_lshl_add_u32 v4, v9, 4, v8")
    E("v_add_u32 v4, s31, v4")
    E("v_xor_b32 v5, 64, v4")
    E("s_lshl_b32 s48, s29, 2")
    E("s_add_u32 s48, s48, s28")
    E("s_lshl_b32 s57, s48, 5")
    E("s_mul_i32 s48, s48, 28672")
    E(f"s_add_u32 s48, s48, {Z1F}")
    E("s_mul_i32 s49, s30, 7")
    E("s_add_u32 s42, s49, s44")
    E("s_lshl_b32 s42, s42, 9")
    E("s_add_u32 s50, s42, s48")
    E("s_add_u32 s51, s50, 1024")
    E("s_add_u32 s52, s50, 2048")
    E("s_mul_i32 s42, s44, 4088")
    E("s_add_u32 s53, s50, 3072")
    E("s_sub_u32 s53, s53, s42")
    E("s_mul_i32 s42, s44, 504")
    E("s_add_u32 s56, s53, s42")
    E("s_lshl_b32 s48, s29, 2")
    E("s_add_u32 s48, s48, s28")
    E("s_mul_i32 s48, s48, 14336")
    E("s_lshl_b32 s49, s30, 7")
    E("s_add_u32 s54, s48, s49")
    E("s_mul_i32 s48, s28, 7168")
    E("s_min_u32 s49, s30, 6")
    E("s_mul_i32 s49, s49, 114688")
    E("s_add_u32 s49, s49, s48")
    for aa in range(4): E(f"s_add_u32 s{88+aa}, s49, {WOF + aa*28672}")
    E("s_lshl_b32 s49, s29, 2")
    for b in range(4):
        E(f"s_xor_b32 s42, s28, {b}")
        E("s_add_u32 s42, s42, s49")
        E("s_mul_i32 s42, s42, 28672")
        E("s_add_u32 s42, s42, s48")
        E(f"s_add_u32 s{92+b}, s42, {HF}")
    QL = [172, 176, 180, 244, 248, 252] + list(range(184, 228, 4)) + list(range(128, 156, 4)) + list(range(228, 244, 4))
    NW15 = int(os.environ.get("NW15", "0")); NWR1 = int(os.environ.get("NWR1", "8")); NWR2 = int(os.environ.get("NWR2", "8"))
    W0 = {}; worder = [(k, aa) for k in range(4) for aa in range(4)]
    for k in range(4, 7):
        for aa in range(4): W0[(k, aa)] = QL.pop()
    def wof(r):
        k, aa = worder.pop(0); W0[(k, aa)] = r
        E(f"buffer_load_dwordx4 v[{r}:{r+3}], v{6 + (k >> 2)}, s[{SWS}:{SWS+3}], s{88+aa} offen offset:{(k & 3)*1024}")
        V.issue(("wo", k))
    E("v_add_u32 v11, 0x400000, v6")
    E("v_and_b32 v12, 15, v1")
    E("v_lshlrev_b32 v12, 1, v12")
    def wread(kp, h):
        for b in range(4):
            r = WF + 16 * h + 4 * b
            E(f"ds_read_b128 v[{r}:{r+3}], v{4+h} offset:{(kp & 1) * 8192 + b * 2048}")
    E("s_bfe_u32 s42, s2, 0x50003")
    E("s_lshl_b32 s42, s42, 2")
    E("s_add_u32 s42, s42, s28")
    code_touch(E, "g", "s42", 2, 128)
    V.wait(("W", 0))
    stamp(E, 1)
    wread(0, 0)
    Z1R = ZB + 28 * 1
    for ks in range(16):
        kp, h = ks >> 1, ks & 1
        E("s_waitcnt lgkmcnt(0)")
        if h == 0: wread(kp, 1)
        if ks + ZD < 16: zbase(ks + ZD)
        if ks in (4, 8, 12): stamp(E, 1 + ks // 4)
        if ks == int(os.environ.get("PRIOKS", "0")): E("s_setprio 1")
        for a in range(7):
            V.wait(("Z", ks, a))
            z = ZB + 28 * (ks % 3) + 4 * a
            for b in range(4):
                c = ACC + 16 * a + 4 * b; w = WF + 16 * h + 4 * b
                src = "0" if ks == 0 else f"v[{c}:{c+3}]"
                E(f"v_mfma_f32_16x16x32_bf16 v[{c}:{c+3}], v[{z}:{z+3}], v[{w}:{w+3}], {src}")
            if ks + ZD < 16: zld(ks + ZD, a)
            if h == 0 and kp + 2 < 8:
                if a == 1: E("s_waitcnt lgkmcnt(0)")
                if 2 <= a <= 5:
                    wdma(kp + 2, 2 * (a - 2)); wdma(kp + 2, 2 * (a - 2) + 1)
            if h == 1 and a == 3 and kp + 1 < 8:
                V.wait(("W", kp + 1))
                wread(kp + 1, 0)
            if ks == 16 - ZD:
                if a == 0:
                    E("v_lshlrev_b32 v14, 3, v1")
                    E("v_add_u32 v14, 0x400000, v14")
                    E("v_and_b32 v15, 15, v1")
                    E("v_mul_u32_u24 v15, 896, v15")
                    E("v_lshl_add_u32 v15, v10, 4, v15")
                if a in (1, 3):
                    E("s_lshl_b32 s42, s28, 11")
                    E(f"s_add_u32 m0, s42, {73728 + (a >> 1) * 1024}")
                    E(f"s_add_u32 s42, s54, {64 * (a >> 1)}")
                    E(f"buffer_load_dwordx4 v15, s[{SX}:{SX+3}], s42 offen lds")
                    V.issue("x")
            if ks == 15 and a >= 7 - NW15: wof(QL.pop(0))
            if ks == 14:
                if a < 6 and a % 2 == 0:
                    E(f"buffer_load_dwordx4 v[{Z1R+2*a}:{Z1R+2*a+3}], v6, s[{SWS}:{SWS+3}], s{50+a//2} offen")
                    V.issue("z1")
                if a == 6:
                    E(f"buffer_load_dwordx2 v[{Z1R+2*a}:{Z1R+2*a+1}], v6, s[{SWS}:{SWS+3}], s53 offen")
                    V.issue("z1")
                if a == 1:
                    E(f"buffer_load_ushort v13, v12, s[{SB}:{SB+3}], s57 offen")
                    V.issue("z1")
    stamp(E, 5)
    E("v_add_u32 v8, s31, v6")
    E("v_xor_b32 v9, 0x4000, v8")
    E("v_xor_b32 v10, 0xC000, v8")
    for a in range(7):
        for i, b in enumerate((1, 3)):
            c = ACC + 16 * a + 4 * b
            E(f"ds_write_b128 v8, v[{c}:{c+3}] offset:{(2*a+i)*1024}")
    E("s_lshl_b32 s43, s29, 10")
    E("s_lshl_b32 s42, s30, 7")
    E("s_add_u32 s42, s42, s43")
    E("s_lshl_b32 s48, s28, 2")
    E("s_add_u32 s42, s42, s48")
    E(f"s_add_u32 s42, s42, {FLG}")
    for i in range(NWR1): wof(QL.pop(0))
    E("s_waitcnt lgkmcnt(0)")
    E("s_barrier")
    T = ZB + 56
    for a in range(7):
        for i in range(2):
            r = ACC + 16 * a + 4 + 8 * i
            E(f"ds_read_b128 v[{r}:{r+3}], v9 offset:{(2*a+i)*1024}")
    for a in range(7):
        E(f"s_waitcnt lgkmcnt({12 - 2*a})")
        for i, b in enumerate((0, 2)):
            c = ACC + 16 * a + 4 * b; r = c + 4
            E(f"v_pk_add_f32 v[{c}:{c+1}], v[{c}:{c+1}], v[{r}:{r+1}]")
            E(f"v_pk_add_f32 v[{c+2}:{c+3}], v[{c+2}:{c+3}], v[{r+2}:{r+3}]")
    for a in range(7):
        c = ACC + 16 * a + 8
        E(f"ds_write_b128 v9, v[{c}:{c+3}] offset:{a*1024}")
    for i in range(NWR2): wof(QL.pop(0))
    E("s_waitcnt lgkmcnt(0)")
    E("s_barrier")
    for a in range(7):
        r = ACC + 16 * a + 12
        E(f"ds_read_b128 v[{r}:{r+3}], v10 offset:{a*1024}")
    stamp(E, 6)
    V.wait("z1")
    E("v_lshlrev_b32 v13, 16, v13")
    for a in range(7):
        E(f"s_waitcnt lgkmcnt({6 - a})")
        c = ACC + 16 * a; r = c + 12; t = c + 4
        E(f"v_pk_add_f32 v[{c}:{c+1}], v[{c}:{c+1}], v[{r}:{r+1}]")
        E(f"v_pk_add_f32 v[{c+2}:{c+3}], v[{c+2}:{c+3}], v[{r+2}:{r+3}]")
        E(f"v_cvt_pk_bf16_f32 v{t}, v{c}, v{c+1}")
        E(f"v_cvt_pk_bf16_f32 v{t+1}, v{c+2}, v{c+3}")
        E(f"v_lshlrev_b32 v{c}, 16, v{t}")
        E(f"v_and_b32 v{c+1}, 0xffff0000, v{t}")
        E(f"v_lshlrev_b32 v{c+2}, 16, v{t+1}")
        E(f"v_and_b32 v{c+3}, 0xffff0000, v{t+1}")
        for k in range(4): E(f"v_add_f32 v{c+k}, v{c+k}, v13")
        E(f"v_cvt_pk_bf16_f32 v{t}, v{c}, v{c+1}")
        E(f"v_cvt_pk_bf16_f32 v{t+1}, v{c+2}, v{c+3}")
        E(f"v_lshlrev_b32 v{c}, 16, v{t}")
        E(f"v_and_b32 v{c+1}, 0xffff0000, v{t}")
        E(f"v_lshlrev_b32 v{c+2}, 16, v{t+1}")
        E(f"v_and_b32 v{c+3}, 0xffff0000, v{t+1}")
        z = Z1R + 2 * a
        E(f"v_lshlrev_b32 v{t}, 16, v{z}")
        E(f"v_and_b32 v{t+1}, 0xffff0000, v{z}")
        E(f"v_lshlrev_b32 v{t+2}, 16, v{z+1}")
        E(f"v_and_b32 v{t+3}, 0xffff0000, v{z+1}")
        E(f"v_pk_mul_f32 v[{c}:{c+1}], v[{c}:{c+1}], v[{t}:{t+1}]")
        E(f"v_pk_mul_f32 v[{c+2}:{c+3}], v[{c+2}:{c+3}], v[{t+2}:{t+3}]")
        o = c + 8 if a % 2 == 0 else c - 16 + 10
        E(f"v_cvt_pk_bf16_f32 v{o}, v{c}, v{c+1}")
        E(f"v_cvt_pk_bf16_f32 v{o+1}, v{c+2}, v{c+3}")
        if a == 6:
            E(f"buffer_store_dwordx2 v[{o}:{o+1}], v14, s[{SWS}:{SWS+3}], s56 offen sc1"); V.issue("hs")
        elif a % 2:
            E(f"buffer_store_dwordx4 v[{o-2}:{o+1}], v11, s[{SWS}:{SWS+3}], s{50+a//2} offen sc1"); V.issue("hs")
    stamp(E, 7)
    E("s_cmp_lg_u32 s30, 7")
    E("s_cbranch_scc1 K2_P3")
    E("s_waitcnt vmcnt(0)")
    flag_store(E, "s42", SWS)
    reread(E, SWS)
    for i in range(8, 12): stamp(E, i)
    stamp_flush(E, 12, SWS, 1)
    E("s_endpgm")
    E.label("K2_P3")
    phase3(E, V, W0, SWS, SO, lambda: [wof(QL.pop(0)) for i in range(len(QL))])

def poll(E, lab, vd, va, so, SWS, pre=False, slp=2):
    E("s_mov_b32 s46, 20000")
    if pre: E(f"s_branch {lab}_C")
    E.label(lab)
    E(f"buffer_load_dword v{vd}, v{va}, s[{SWS}:{SWS+3}], {so} offen sc1")
    E("s_waitcnt vmcnt(0)")
    E.label(lab + "_C")
    E(f"v_cmp_eq_u32 vcc, 0, v{vd}")
    E(f"s_cbranch_vccz {lab}_D")
    E(f"s_sleep {slp}")
    E("s_sub_u32 s46, s46, 1")
    E(f"s_cbranch_scc0 {lab}")
    E.label(lab + "_D")

def reread(E, SWS):
    if not RERD: return 0
    for p in range(3): E(f"buffer_load_dwordx4 v[{80+4*p}:{83+4*p}], v11, s[{SWS}:{SWS+3}], s{50+p} offen")
    E(f"buffer_load_dwordx2 v[92:93], v14, s[{SWS}:{SWS+3}], s56 offen")
    return 4

def flag_store(E, so, SWS, vt=(3, 4)):
    E(f"v_mov_b32 v{vt[0]}, 0")
    E(f"v_mov_b32 v{vt[1]}, 1")
    E("s_mov_b64 exec, 1")
    E(f"buffer_store_dword v{vt[1]}, v{vt[0]}, s[{SWS}:{SWS+3}], {so} offen sc1")
    E("s_mov_b64 exec, -1")

def phase3(E, V, W0, SWS, SO, rest):
    HQ = {(k, b): 80 + 16 * k + 4 * b for k in range(3) for b in range(4)}
    for b in range(4):
        HQ[(3, b)] = 156 + 4 * b
        for k in range(4, 7): HQ[(k, b)] = W0[(k, b)]
    E("s_lshl_b32 s44, s28, 11")
    E("v_mov_b32 v2, v15")
    E("s_lshl_b32 s43, s29, 10")
    E(f"s_add_u32 s43, s43, {FLG}")
    E("v_and_b32 v5, 3, v1")
    E("v_lshlrev_b32 v5, 2, v5")
    E("v_bfe_u32 v9, v1, 2, 3")
    E("v_lshl_add_u32 v5, v9, 7, v5")
    E("s_cmp_lt_u32 s30, 6")
    E("s_cselect_b32 s48, 1, 0")
    E("v_and_b32 v9, 15, v1")
    E("v_lshrrev_b32 v9, s48, v9")
    E("v_lshlrev_b32 v9, 7, v9")
    E("s_lshr_b32 s49, s44, s48")
    E("s_lshl_b32 s45, s30, 12")
    E("s_add_u32 s45, s45, s49")
    E("s_lshr_b32 s49, s29, 3")
    E("s_lshl_b32 s49, s49, 2")
    E("s_add_u32 s45, s45, s49")
    E(f"s_add_u32 s45, s45, {FLG + 256*128}")
    E(f"buffer_load_dword v10, v9, s[{SWS}:{SWS+3}], s45 offen sc1")
    V.issue("py")
    E("s_barrier")
    E("v_lshrrev_b32 v12, 3, v1")
    E("v_lshlrev_b32 v12, 12, v12")
    E("v_and_b32 v13, 7, v1")
    E("v_lshl_add_u32 v12, v13, 4, v12")
    E("s_lshl_b32 s47, s30, 2")
    E("s_add_u32 s47, s47, s28")
    E("s_lshl_b32 s47, s47, 16")
    E("s_lshl_b32 s49, s29, 7")
    E("s_add_u32 s47, s47, s49")
    E(f"s_add_u32 s47, s47, {YT}")
    E("s_add_u32 s49, s47, 32768")
    V.wait("hs")
    flag_store(E, "s42", SWS)
    V.issue("fl")
    for i in range(reread(E, SWS)): V.issue("rr")
    stamp(E, 8)
    V.wait("py")
    E("v_cmp_eq_u32 vcc, 0, v10")
    E("s_mov_b64 s[40:41], vcc")
    E("s_cbranch_vccnz K2G_NOY")
    E(f"s_add_u32 m0, s44, 65536")
    E(f"buffer_load_dwordx4 v12, s[{SWS}:{SWS+3}], s47 offen sc1 lds")
    E(f"s_add_u32 m0, s44, {65536 + 1024}")
    E(f"buffer_load_dwordx4 v12, s[{SWS}:{SWS+3}], s49 offen sc1 lds")
    E.label("K2G_NOY")
    rest()
    WR = {k: [W0[(k % 4 if k > 3 else k, aa)] for aa in range(4)] for k in range(7)}
    for k in range(4, 7):
        for aa in range(4):
            E(f"s_add_u32 m0, s31, {((k-4)*4+aa)*1024}")
            E(f"s_add_u32 s48, s{88+aa}, {k*1024}")
            E(f"buffer_load_dwordx4 v6, s[{SWS}:{SWS+3}], s48 offen lds")
    E("v_lshlrev_b32 v4, 3, v1")
    E("s_waitcnt lgkmcnt(0)")
    E("s_cmp_lg_u32 s28, 0")
    E("s_cbranch_scc1 K2G_PH_D")
    poll(E, "K2G_PH", 10, 5, "s43", SWS, slp=1)
    E("s_waitcnt vmcnt(0)")
    E("s_barrier")
    stamp(E, 9)
    V.q = []; V.done = 0
    def hld(k, b):
        if k == 6 and b == 0:
            E(f"buffer_load_dword v10, v9, s[{SWS}:{SWS+3}], s45 offen sc1")
            V.issue("py2")
        r = HQ[(k, b)]
        if k == 3:
            for e in range(2):
                E(f"buffer_load_dwordx2 v[{r+2*e}:{r+2*e+1}], v4, s[{SWS}:{SWS+3}], s{92+b} offen offset:{3072 + 512*e}{HSC}")
                V.issue((k, b))
            return
        E(f"buffer_load_dwordx4 v[{r}:{r+3}], v{6 + (k >> 2)}, s[{SWS}:{SWS+3}], s{92+b} offen offset:{(k & 3)*1024}{HSC}")
        V.issue((k, b))
    HPRE = int(os.environ.get("HPRE", "2"))
    for k in range(HPRE):
        for b in range(4): hld(k, b)
    if DBG3: stamp(E, 2)
    def wrd(k):
        for aa in range(4):
            r = WR[k][aa]
            E(f"ds_read_b128 v[{r}:{r+3}], v8 offset:{((k-4)*4+aa)*1024}")
    for k in range(1, 4): E(f"v_xor_b32 v{12+k}, {k << 14}, v8")
    E("v_lshrrev_b32 v3, 4, v1")
    E("v_bfe_u32 v11, v1, 2, 2")
    E("v_lshl_add_u32 v11, v3, 3, v11")
    E("v_lshlrev_b32 v11, 7, v11")
    E("v_and_b32 v3, 3, v1")
    E("v_lshl_add_u32 v11, v3, 3, v11")
    E("s_lshl_b32 s48, s28, 5")
    E("s_add_u32 s48, s48, 65536")
    E("v_add_u32 v11, s48, v11")
    E("s_lshl_b32 s48, s28, 11")
    E("v_add_u32 v3, s48, v6")
    E("v_add_u32 v3, 73728, v3")
    for k in range(7):
        if k >= 4: E(f"s_waitcnt lgkmcnt({(6 - k) * 4})")
        if k == 6:
            V.wait("py2")
            E("s_cmp_eq_u64 s[40:41], 0")
            E("s_cbranch_scc1 K2G_NOY2")
            E("v_cmp_eq_u32 vcc, 0, v10")
            E("s_mov_b64 s[40:41], vcc")
            E("s_cbranch_vccnz K2G_NOY2")
            E(f"s_add_u32 m0, s44, 65536")
            E(f"buffer_load_dwordx4 v12, s[{SWS}:{SWS+3}], s47 offen sc1 lds")
            E(f"s_add_u32 m0, s44, {65536 + 1024}")
            E(f"buffer_load_dwordx4 v12, s[{SWS}:{SWS+3}], s49 offen sc1 lds")
            E("s_waitcnt vmcnt(2)")
            E.label("K2G_NOY2")
        for b in range(4):
            V.wait((k, b))
            if DBG3 and b == 0 and k in (0, 4): stamp(E, 3 + k // 4)
            for aa in range(4):
                c = 16 + 16 * b + 4 * aa; a = WR[k][aa]; bb = HQ[(k, b)]
                E(f"v_mfma_f32_16x16x32_bf16 v[{c}:{c+3}], v[{a}:{a+3}], v[{bb}:{bb+3}], {'0' if k == 0 else f'v[{c}:{c+3}]'}")
            if k + HPRE < 7: hld(k + HPRE, b)
        if k < 3: wrd(k + 4)
    stamp(E, 10)
    E("s_cmp_eq_u64 s[40:41], 0")
    E("s_cbranch_scc1 K2G_YOK")
    poll(E, "K2G_PY", 10, 9, "s45", SWS)
    E(f"s_add_u32 m0, s44, 65536")
    E(f"buffer_load_dwordx4 v12, s[{SWS}:{SWS+3}], s47 offen sc1 lds")
    E(f"s_add_u32 m0, s44, {65536 + 1024}")
    E(f"buffer_load_dwordx4 v12, s[{SWS}:{SWS+3}], s49 offen sc1 lds")
    E.label("K2G_YOK")
    for b in range(1, 4):
        for aa in range(4):
            c = 16 + 16 * b + 4 * aa
            E(f"ds_write_b128 v8, v[{c}:{c+3}] offset:{((b-1)*4+aa)*1024}")
    X, Y, T1, T2, OUT, PR = 128, 136, 144, 160, 176, 80
    for hh in range(2): E(f"ds_read_b128 v[{X+4*hh}:{X+4*hh+3}], v3 offset:{1024*hh}")
    E("s_waitcnt vmcnt(0) lgkmcnt(0)")
    if DBG3: stamp(E, 5)
    E("s_barrier")
    if DBG3: stamp(E, 1)
    for hh in range(2):
        for h2 in range(2):
            E(f"ds_read_b64_tr_b16 v[{Y+4*hh+2*h2}:{Y+1+4*hh+2*h2}], v11 offset:{(32*hh+4*h2)*128}")
    for aa in range(4):
        for k in range(1, 4):
            r = PR + 16 * (k - 1) + 4 * aa
            E(f"ds_read_b128 v[{r}:{r+3}], v{12+k} offset:{((k-1)*4+aa)*1024}")
    for i in range(8):
        E(f"v_lshlrev_b32 v{T1+2*i}, 16, v{X+i}")
        E(f"v_and_b32 v{T1+2*i+1}, 0xffff0000, v{X+i}")
    E("s_waitcnt lgkmcnt(12)")
    for i in range(8):
        E(f"v_lshlrev_b32 v{T2+2*i}, 16, v{Y+i}")
        E(f"v_and_b32 v{T2+2*i+1}, 0xffff0000, v{Y+i}")
    for i in range(8): E(f"v_pk_add_f32 v[{T1+2*i}:{T1+2*i+1}], v[{T1+2*i}:{T1+2*i+1}], v[{T2+2*i}:{T2+2*i+1}]")
    for i in range(8): E(f"v_cvt_pk_bf16_f32 v{X+i}, v{T1+2*i}, v{T1+2*i+1}")
    for i in range(8):
        E(f"v_lshlrev_b32 v{T1+2*i}, 16, v{X+i}")
        E(f"v_and_b32 v{T1+2*i+1}, 0xffff0000, v{X+i}")
    for aa in range(4):
        E(f"s_waitcnt lgkmcnt({9 - 3*aa})")
        for p in (0, 2):
            c = 16 + 4 * aa + p; r = PR + 4 * aa + p
            E(f"v_pk_add_f32 v[{c}:{c+1}], v[{c}:{c+1}], v[{r}:{r+1}]")
            E(f"v_pk_add_f32 v[{r+16}:{r+17}], v[{r+16}:{r+17}], v[{r+32}:{r+33}]")
        for p in (0, 2):
            c = 16 + 4 * aa + p; r = PR + 4 * aa + p
            E(f"v_pk_add_f32 v[{c}:{c+1}], v[{c}:{c+1}], v[{r+16}:{r+17}]")
        for p in (0, 2):
            c = 16 + 4 * aa + p; r = PR + 4 * aa + p; t = T1 + 4 * aa + p
            E(f"v_cvt_pk_bf16_f32 v{r}, v{c}, v{c+1}")
            E(f"v_lshlrev_b32 v{c}, 16, v{r}")
            E(f"v_and_b32 v{c+1}, 0xffff0000, v{r}")
            E(f"v_pk_add_f32 v[{c}:{c+1}], v[{c}:{c+1}], v[{t}:{t+1}]")
            E(f"v_cvt_pk_bf16_f32 v{OUT + 2*aa + p//2}, v{c}, v{c+1}")
        if aa & 1:
            hh = aa >> 1
            E(f"buffer_store_dwordx4 v[{OUT+4*hh}:{OUT+4*hh+3}], v2, s[{SO}:{SO+3}], s54 offen offset:{64*hh}")
    stamp(E, 11)
    stamp_flush(E, 12, SWS, 1)
    E("s_endpgm")

TABW = 57 * 272
URB = 4 * TABW
KPB = URB + 4608 + 16
KXB = 70752
KX1 = 4160
UR2 = 40960
LOG2E = 1.4426950408889634

def kgen(E, P, swq, sgb, kpoff, stamps=0, pre_write=None):
    import struct
    def exp_acc(dst, src):
        hi32 = struct.unpack("<f", struct.pack("<f", LOG2E))[0]; lo = LOG2E - hi32
        E(f"v_mul_f32 v12, {f32hex(hi32)}, {src}")
        E(f"v_mov_b32 v14, {f32hex(hi32)}")
        E(f"v_fma_f32 v13, {src}, v14, -v12")
        E(f"v_fmac_f32 v13, {f32hex(lo)}, {src}")
        E(f"v_exp_f32 v12, v12")
        E(f"v_mul_f32 v13, {f32hex(math.log(2.0))}, v13")
        E(f"v_fma_f32 {dst}, v12, v13, v12")
    E("v_lshlrev_b32 v5, 16, v5")
    exp_acc("v9", "v9"); bf16r(E, "v9", "v9")
    exp_acc("v5", "v5"); bf16r(E, "v5", "v5")
    if stamps: stamp(E, stamps)
    for r in (6, 7, 8): E(f"v_lshlrev_b32 v{r}, 16, v{r}")
    E("v_mul_f32 v5, -v5, v9")
    E("v_mul_f32 v6, v6, v9")
    T, F, H, W = 32, 48, 66, 84
    TH, FH, HH, WH, GH = 96, 104, 120, 138, 140
    E(f"v_mul_f32 v{H}, v7, v9")
    E(f"v_mul_f32 v{H+1}, v8, v9")
    E(f"v_mul_f32 v{H}, {f32hex(64.0)}, v{H}")
    E(f"v_mul_f32 v{H+1}, {f32hex(64.0)}, v{H+1}")
    for m, dst, t in ((1, T + 2, 27), (8, F + 2, 28), (128, W, 29)):
        E(f"v_mul_f32 v{t}, {f32hex(m * LOG2E)}, v5")
        E(f"v_mul_f32 v{dst+1}, {f32hex(m / (2 * math.pi))}, v6")
        E(f"v_exp_f32 v{t}, v{t}")
        E(f"v_cos_f32 v{dst}, v{dst+1}")
        E(f"v_sin_f32 v{dst+1}, v{dst+1}")
    for m, dst, t in ((1, T + 2, 27), (8, F + 2, 28), (128, W, 29)):
        E(f"v_mul_f32 v{dst}, v{dst}, v{t}")
        E(f"v_mul_f32 v{dst+1}, v{dst+1}, v{t}")
    def cmul_batch(lst):
        for z, x, y in lst:
            E(f"v_mul_f32 v{z}, v{x}, v{y}")
            E(f"v_mul_f32 v{z+1}, v{x+1}, v{y}")
        for z, x, y in lst:
            E(f"v_fma_f32 v{z}, -v{x+1}, v{y+1}, v{z}")
            E(f"v_fmac_f32 v{z+1}, v{x}, v{y+1}")
    def hmul_batch(lst, rows):
        for z, x, y in lst: E(f"v_pk_mul_f16 v{z}, v{x}, v{y} op_sel:[0,0] op_sel_hi:[1,0]")
        for (z, x, y), r in zip(lst, rows):
            E(f"v_pk_fma_f16 v{z}, v{x}, v{y}, v{z} op_sel:[1,1,0] op_sel_hi:[0,1,1] neg_lo:[1,0,0]")
        for (z, x, y), r in zip(lst, rows): E(f"ds_write_b32 v11, v{z} offset:{r * 272}")
    t = lambda k: T + 2 * k
    f = lambda k: F + 2 * k
    h = lambda k: H + 2 * k
    w = lambda i: W + 2 * i
    E(f"s_mul_i32 s48, {swq}, {TABW}")
    if sgb: E(f"s_add_u32 s48, s48, {sgb}")
    E("v_lshlrev_b32 v11, 2, v1")
    E("v_add_u32 v11, s48, v11")
    def put(row, dst, src, neg):
        E(f"v_cvt_pk_f16_f32 v{dst}, v{src}, {'-' if neg else ''}v{src+1}")
        if row is not None: E(f"ds_write_b32 v11, v{dst} offset:{row * 272}")
    hrow = [0, 8, 16, 20, 24, 26, 28, 30] + [32 + k for k in range(8)]
    def sq_batch(lst):
        for z, x in lst:
            E(f"v_mul_f32 v{z}, v{x}, v{x}")
            E(f"v_add_f32 v{z+1}, v{x}, v{x}")
        for z, x in lst:
            E(f"v_fma_f32 v{z}, -v{x+1}, v{x+1}, v{z}")
            E(f"v_mul_f32 v{z+1}, v{z+1}, v{x+1}")
    def hm(lst):
        for z, x, y, r in lst: E(f"v_pk_mul_f16 v{z}, v{x}, v{y} op_sel:[0,0] op_sel_hi:[1,0]")
        for z, x, y, r in lst: E(f"v_pk_fma_f16 v{z}, v{x}, v{y}, v{z} op_sel:[1,1,0] op_sel_hi:[0,1,1] neg_lo:[1,0,0]")
        for z, x, y, r in lst:
            if r is not None: E(f"ds_write_b32 v11, v{z} offset:{r * 272}")
    WQ = 180
    sq_batch([(t(2), t(1)), (f(2), f(1)), (w(1), w(0))])
    if pre_write: pre_write()
    E("v_mov_b32 v30, 0x3c00")
    E(f"ds_write_b32 v11, v30 offset:{41 * 272}")
    put(0, HH, h(0), True); put(42, FH + 1, f(1), False); put(None, TH + 1, t(1), True); put(None, WQ, w(0), True)
    sq_batch([(t(4), t(2)), (f(4), f(2)), (w(2), w(1))])
    put(43, FH + 2, f(2), False); put(None, TH + 2, t(2), True); put(None, WQ + 1, w(1), True)
    sq_batch([(f(8), f(4)), (w(3), w(2))])
    put(45, FH + 4, f(4), False); put(None, TH + 4, t(4), True); put(None, WQ + 2, w(2), True)
    hm([(HH + 1, HH, WQ, hrow[1]), (HH + 2, HH, WQ + 1, hrow[2]), (TH + 3, TH + 2, TH + 1, None), (FH + 3, FH + 2, FH + 1, 44),
        (HH + 4, HH, WQ + 2, hrow[4]), (TH + 5, TH + 4, TH + 1, None), (TH + 6, TH + 4, TH + 2, None),
        (FH + 5, FH + 4, FH + 1, 46), (FH + 6, FH + 4, FH + 2, 47)])
    put(49, FH + 8, f(8), False); put(None, WH, w(3), True)
    hm([(HH + 3, HH + 1, WQ + 1, hrow[3]), (HH + 5, HH + 1, WQ + 2, hrow[5]), (HH + 6, HH + 2, WQ + 2, hrow[6]),
        (TH + 7, TH + 4, TH + 3, None), (FH + 7, FH + 4, FH + 3, 48)] +
       [(HH + 8 + k, HH + k, WH, hrow[8 + k]) for k in (0, 1, 2, 4)] + [(FH + 8 + k, FH + 8, FH + k, 49 + k) for k in range(1, 7)])
    if stamps > 2: stamp(E, stamps + 2)
    hm([(HH + 7, HH + 3, WQ + 2, hrow[7]), (FH + 15, FH + 8, FH + 7, 56)] + [(HH + 8 + k, HH + k, WH, hrow[8 + k]) for k in (3, 5, 6)])
    rows = [(8 * hh + e, HH + hh, TH + e) for hh in range(2) for e in range(1, 8)]
    rows += [(16 + 4 * hh + e, HH + 2 + hh, TH + 2 * e) for hh in range(2) for e in range(1, 4)]
    rows += [(24 + 2 * hh + 1, HH + 4 + hh, TH + 4) for hh in range(4)]
    rows += [(40, HH + 8, WH), (39, HH + 7, WH)]
    for lo_, hi_ in ((0, 13), (13, 26)):
        hmul_batch([(GH + i, x, y) for i, (r, x, y) in list(enumerate(rows))[lo_:hi_]], [r for r, x, y in rows[lo_:hi_]])
    if stamps: stamp(E, stamps + 1)
    E("v_mul_u32_u24 v12, 272, v25")
    E("v_lshl_add_u32 v12, v26, 4, v12")
    E("v_add_u32 v12, s48, v12")
    FRG = 32
    for q in range(4):
        E(f"ds_read_b128 v[{FRG+16*q}:{FRG+16*q+3}], v12 offset:{41*272 + 64*q}")
        for m in range(3):
            if q == 3 and m == 2: E("s_waitcnt lgkmcnt(14)")
            E(f"ds_read_b128 v[{FRG+16*q+4+4*m}:{FRG+16*q+7+4*m}], v12 offset:{16*m*272 + 64*q}")
    E("v_lshlrev_b32 v13, 4, v1")
    E("v_add_u32 v15, s48, v13")
    E(f"s_lshl_b32 s48, {swq}, 10")
    if sgb: E(f"s_add_u32 s48, s48, {sgb}")
    E("v_add_u32 v13, s48, v13")
    E(f"v_mov_b32 v14, {kpoff}")
    E("v_lshl_add_u32 v14, v25, 4, v14")
    if sgb: E(f"v_add_u32 v14, {sgb}, v14")
    for q in range(4):
        for m in range(3):
            E(f"s_waitcnt lgkmcnt({14 - 4*q - m})")
            c = 160 + 4 * m
            E(f"v_mfma_f32_16x16x32_f16 v[{c}:{c+3}], v[{FRG+16*q+4+4*m}:{FRG+16*q+7+4*m}], v[{FRG+16*q}:{FRG+16*q+3}], {'0' if q == 0 else f'v[{c}:{c+3}]'}")
    for m in range(3): E(f"ds_write_b128 v15, v[{160+4*m}:{163+4*m}] offset:{1024*m}")
    E("s_waitcnt lgkmcnt(0)")
    E("s_barrier")
    if stamps > 2: stamp(E, stamps + 3)
    E(f"s_cmp_eq_u32 {swq}, 3")
    E(f"s_cbranch_scc1 {P}_SKIPM")
    for ww in range(4): E(f"ds_read_b128 v[{160+4*ww}:{163+4*ww}], v13 offset:{ww*TABW}")
    E("s_waitcnt lgkmcnt(0)")
    for k in range(4): E(f"v_add_f32 v{160+k}, v{160+k}, v{164+k}")
    for k in range(4): E(f"v_add_f32 v{168+k}, v{168+k}, v{172+k}")
    for k in range(4): E(f"v_add_f32 v{160+k}, v{160+k}, v{168+k}")
    for k in range(4): E(f"v_mul_f32 v{160+k}, {f32hex(2.0 / 64)}, v{160+k}")
    E("v_cvt_pk_bf16_f32 v164, v160, v161")
    E("v_cvt_pk_bf16_f32 v165, v162, v163")
    E(f"s_cmp_eq_u32 {swq}, 1")
    E(f"s_cbranch_scc1 {P}_M1")
    E(f"s_cmp_eq_u32 {swq}, 2")
    E(f"s_cbranch_scc1 {P}_M2")
    E("v_lshrrev_b32 v12, 1, v26")
    E("v_lshl_add_u32 v14, v12, 8, v14")
    E("v_and_b32 v12, 1, v26")
    E("v_lshl_add_u32 v14, v12, 3, v14")
    E("ds_write_b64 v14, v[164:165]")
    E(f"s_branch {P}_SKIPM")
    E.label(f"{P}_M1")
    E("v_lshl_add_u32 v12, v26, 8, v14")
    E("v_lshl_add_u32 v13, v26, 9, v14")
    E("s_mov_b32 exec_hi, 0")
    E("ds_write_b16 v12, v164 offset:512")
    E("ds_write_b16_d16_hi v12, v164 offset:516")
    E("ds_write_b16 v12, v165 offset:520")
    E("ds_write_b16_d16_hi v12, v165 offset:524")
    E("s_mov_b32 exec_hi, -1")
    E("s_mov_b32 exec_lo, 0")
    E("ds_write_b16 v13, v164")
    E("ds_write_b16_d16_hi v13, v164 offset:8")
    E("ds_write_b16 v13, v165 offset:256")
    E("ds_write_b16_d16_hi v13, v165 offset:264")
    E("s_mov_b64 exec, -1")
    E(f"s_branch {P}_SKIPM")
    E.label(f"{P}_M2")
    E("v_lshl_add_u32 v12, v26, 10, v14")
    E("s_mov_b32 exec_hi, 0")
    E("ds_write_b16 v12, v164 offset:2048")
    E("ds_write_b16_d16_hi v12, v164 offset:2304")
    E("ds_write_b16 v12, v165 offset:2560")
    E("ds_write_b16_d16_hi v12, v165 offset:2816")
    E("s_mov_b32 exec_hi, 1")
    E("s_mov_b32 exec_lo, 0")
    E("ds_write_b16 v12, v164 offset:2046")
    E("s_mov_b64 exec, -1")
    E.label(f"{P}_SKIPM")
    if stamps > 2: stamp(E, stamps + 4)
    E("s_waitcnt lgkmcnt(0)")
    E("s_barrier")

def conv(E):
    SWS, SLA, SAI, SCR, SCI, SDT, SDS = 12, 20, 24, 32, 36, 40, 44
    load_srds(E, [("ws", SWS), ("lar", SLA), ("aim", SAI), ("cre", SCR), ("cim", SCI), ("ldt", SDT), ("dsk", SDS)])
    stamp(E, 0)
    E("s_sub_u32 s29, s2, 256")
    E("s_mov_b32 s52, 0")
    E("s_add_u32 s48, s29, 192")
    E("s_lshl_b32 s29, s29, 1")
    E("s_cmp_ge_u32 s29, 384")
    E("s_cselect_b32 s29, s48, s29")
    E("s_cselect_b32 s52, 1, 0")
    E("v_lshlrev_b32 v2, 1, v0")
    E("s_lshl_b32 s30, s29, 9")
    E("s_lshl_b32 s31, s29, 1")
    E("v_mov_b32 v3, 0")
    E("v_lshlrev_b32 v4, 4, v1")
    E(f"s_mul_i32 s48, s29, {XS}")
    E("s_lshl_b32 s51, s28, 10")
    E("s_add_u32 s50, s48, s51")
    E(f"s_add_u32 s50, s50, {XNT}")
    E(f"s_add_u32 s51, s51, {URB}")
    E("s_mov_b32 m0, s51")
    E(f"s_mov_b32 s53, {URB}")
    E("s_waitcnt lgkmcnt(0)")
    E(f"buffer_load_ushort v9, v3, s[{SDT}:{SDT+3}], s31 offen")
    E(f"buffer_load_ushort v5, v2, s[{SLA}:{SLA+3}], s30 offen")
    E(f"buffer_load_ushort v6, v2, s[{SAI}:{SAI+3}], s30 offen")
    E(f"buffer_load_ushort v7, v2, s[{SCR}:{SCR+3}], s30 offen")
    E(f"buffer_load_ushort v8, v2, s[{SCI}:{SCI+3}], s30 offen")
    E(f"buffer_load_ushort v10, v3, s[{SDS}:{SDS+3}], s31 offen")
    E(f"buffer_load_ushort v205, v3, s[{SDS}:{SDS+3}], s31 offen offset:2")
    E(f"buffer_load_dwordx4 v4, s[{SWS}:{SWS+3}], s50 offen lds")
    E("s_lshl_b32 s48, s29, 11")
    E("s_lshl_b32 s49, s28, 10")
    E("s_add_u32 s48, s48, s49")
    E(f"s_add_u32 s48, s48, {KPG}")
    E(f"s_add_u32 s50, s50, {XS}")
    E("s_mov_b32 s54, s52")
    E(f"buffer_load_dwordx4 v[206:209], v4, s[{SWS}:{SWS+3}], s48 offen")
    E(f"buffer_load_dwordx4 v[210:213], v4, s[{SWS}:{SWS+3}], s50 offen")
    E("v_mov_b32 v12, 0"); E("v_mov_b32 v13, 0")
    E("v_lshlrev_b32 v11, 3, v1")
    E(f"v_add_u32 v14, {URB + 4096}, v11")
    E("ds_write_b64 v14, v[12:13]")
    E("v_and_b32 v11, 24, v11")
    E(f"v_add_u32 v11, {KXB}, v11")
    E("ds_write_b64 v11, v[12:13]")
    E(f"ds_write_b64 v11, v[12:13] offset:{KX1}")
    E(f"v_mov_b32 v11, {KPB - 8}")
    E("ds_write_b64 v11, v[12:13]")
    GA = 16
    E("v_lshlrev_b32 v11, 3, v0")
    for i in range(9):
        E(f"v_add_u32 v{GA+i}, {i-1}, v11")
    for i in range(9): E(f"v_cvt_f32_i32 v{GA+i}, v{GA+i}")
    for i in range(9): bf16r(E, f"v{GA+i}", f"v{GA+i}")
    for i in range(9): E(f"v_cvt_i32_f32 v{GA+i}, v{GA+i}")
    for i in range(9): E(f"v_min_i32 v{GA+i}, 2047, v{GA+i}")
    E(f"v_mov_b32 v11, {KPB}")
    for i in range(9): E(f"v_lshl_add_u32 v{GA+i}, v{GA+i}, 1, v11")
    E("v_and_b32 v25, 15, v1")
    E("v_lshrrev_b32 v26, 4, v1")
    E("s_waitcnt vmcnt(3)")
    E("v_lshlrev_b32 v205, 16, v205")
    E("v_lshlrev_b32 v9, 16, v9")
    E("v_lshlrev_b32 v10, 16, v10")
    kgen(E, "K2C", "s28", None, KPB, stamps=1)
    E.label("K2C_LOOP")
    stamp(E, 3)
    for i in range(9): E(f"ds_read_u16 v{40 + i}, v{GA + i}")
    E("v_lshlrev_b32 v11, 4, v0")
    E(f"v_add_u32 v11, {KXB + 32}, v11")
    E("s_lshl_b32 s48, s28, 7")
    E("v_lshl_add_u32 v12, v26, 3, v25")
    E("v_lshlrev_b32 v12, 1, v12")
    E("v_and_b32 v14, 1, v25")
    E("v_xor_b32 v14, 1, v14")
    E(f"v_mul_u32_u24 v14, {KX1 + 2}, v14")
    E(f"s_add_u32 s49, s48, {KXB + 2}")
    E("v_add3_u32 v12, v12, v14, s49")
    E("v_lshlrev_b32 v13, 4, v26")
    E("v_lshlrev_b32 v14, 5, v25")
    E("v_sub_u32 v13, v13, v14")
    E("s_add_u32 s49, s48, s53")
    E(f"s_add_u32 s49, s49, {4064 - 3584}")
    E("v_add_u32 v13, s49, v13")
    E("s_waitcnt lgkmcnt(0)")
    for i in range(4):
        E(f"v_lshl_or_b32 v{32+i}, v{42+2*i}, 16, v{41+2*i}")
        E(f"v_lshl_or_b32 v{36+i}, v{41+2*i}, 16, v{40+2*i}")
    E("ds_write_b128 v11, v[32:35]")
    E(f"ds_write_b128 v11, v[36:39] offset:{KX1}")
    E("s_waitcnt vmcnt(0) lgkmcnt(0)")
    E("s_barrier")
    stamp(E, 4)
    E("s_cmp_lg_u32 s52, 0")
    E("s_cbranch_scc1 K2C_NOKP")
    E("v_lshlrev_b32 v11, 4, v0")
    E(f"v_add_u32 v14, {KPB}, v11")
    E("ds_write_b128 v14, v[206:209]")
    E(f"ds_write_b128 v11, v[210:213] offset:{UR2}")
    E("v_mov_b32 v14, 0"); E("v_mov_b32 v15, 0")
    E("v_lshlrev_b32 v11, 3, v1")
    E(f"ds_write_b64 v11, v[14:15] offset:{UR2 + 4096}")
    E.label("K2C_NOKP")
    AF, BF, AC = 32, 96, 160
    def rd(rho, k):
        for i in range(4): E(f"ds_read_b32 v{AF+32*rho+4*k+i}, v12 offset:{512*k + 64*rho + 4*i}")
        E(f"ds_read_b128 v[{BF+32*rho+4*k}:{BF+32*rho+4*k+3}], v13 offset:{512*(7-k) + 64*rho}")
    def mm(rho, q, p, first):
        c = AC + 4 * (q + p); a = AF + 32 * rho + 4 * q; b = BF + 32 * rho + 4 * p
        E(f"v_mfma_f32_16x16x32_bf16 v[{c}:{c+3}], v[{a}:{a+3}], v[{b}:{b+3}], {'0' if first else f'v[{c}:{c+3}]'}")
    seen = set()
    def stage(rho, k):
        prs = [(q, p) for q in range(k + 1) for p in range(k + 1) if max(q, p) == k and q + p <= 7]
        prs.sort(key=lambda x: (x[0] + x[1] + (8 if x[0] < x[1] else 0)))
        for q, p in prs:
            mm(rho, q, p, (q + p) not in seen); seen.add(q + p)
    seq = [(rho, k) for rho in range(2) for k in range(8)]
    rd(*seq[0]); rd(*seq[1]); rd(*seq[2])
    for i, (rho, k) in enumerate(seq):
        rem = min(2, len(seq) - 1 - i)
        E(f"s_waitcnt lgkmcnt({5 * rem})")
        if i + 3 < len(seq): rd(*seq[i + 3])
        stage(rho, k)
    stamp(E, 5)
    E("s_lshl_b32 s48, s28, 13")
    E("v_add_u32 v11, s48, v4")
    for o in range(8): E(f"ds_write_b128 v11, v[{AC+4*o}:{AC+4*o+3}] offset:{o*1024}")
    E("s_lshl_b32 s48, s28, 11")
    E("v_add_u32 v11, s48, v4")
    E("v_lshlrev_b32 v12, 3, v26")
    E("v_lshl_add_u32 v12, v25, 5, v12")
    E("s_lshl_b32 s48, s28, 10")
    E("s_sub_u32 s49, s53, s48")
    E(f"s_add_u32 s49, s49, {4088 - 512}")
    E("v_sub_u32 v13, s49, v12")
    E("s_lshl_b32 s49, s29, 12")
    E("s_add_u32 s49, s49, s48")
    E(f"s_add_u32 s49, s49, {YT}")
    E("s_waitcnt lgkmcnt(0)")
    E("s_barrier")
    for e in range(2):
        for ww in range(4):
            r = 32 + 16 * e + 4 * ww
            E(f"ds_read_b128 v[{r}:{r+3}], v11 offset:{ww*8192 + e*1024}")
        E(f"ds_read_b64 v[{64+2*e}:{65+2*e}], v13 offset:{512*(1-e)}")
    for e in range(2):
        E(f"s_waitcnt lgkmcnt({5*(1-e)})")
        r = 32 + 16 * e; u = 64 + 2 * e; s = 72 + 8 * e
        for k in (0, 2):
            E(f"v_pk_add_f32 v[{r+k}:{r+k+1}], v[{r+k}:{r+k+1}], v[{r+4+k}:{r+5+k}]")
            E(f"v_pk_add_f32 v[{r+8+k}:{r+9+k}], v[{r+8+k}:{r+9+k}], v[{r+12+k}:{r+13+k}]")
        for k in (0, 2):
            E(f"v_pk_add_f32 v[{r+k}:{r+k+1}], v[{r+k}:{r+k+1}], v[{r+8+k}:{r+9+k}]")
        E(f"v_and_b32 v{s}, 0xffff0000, v{u+1}")
        E(f"v_lshlrev_b32 v{s+1}, 16, v{u+1}")
        E(f"v_and_b32 v{s+2}, 0xffff0000, v{u}")
        E(f"v_lshlrev_b32 v{s+3}, 16, v{u}")
        for k in range(4): E(f"v_mul_f32 v{s+k}, v{s+k}, v10")
        for x in (r, s):
            E(f"v_cvt_pk_bf16_f32 v{s+4}, v{x}, v{x+1}")
            E(f"v_cvt_pk_bf16_f32 v{s+5}, v{x+2}, v{x+3}")
            E(f"v_lshlrev_b32 v{x}, 16, v{s+4}")
            E(f"v_and_b32 v{x+1}, 0xffff0000, v{s+4}")
            E(f"v_lshlrev_b32 v{x+2}, 16, v{s+5}")
            E(f"v_and_b32 v{x+3}, 0xffff0000, v{s+5}")
        E(f"v_pk_add_f32 v[{r}:{r+1}], v[{r}:{r+1}], v[{s}:{s+1}]")
        E(f"v_pk_add_f32 v[{r+2}:{r+3}], v[{r+2}:{r+3}], v[{s+2}:{s+3}]")
        E(f"v_cvt_pk_bf16_f32 v{88+2*e}, v{r}, v{r+1}")
        E(f"v_cvt_pk_bf16_f32 v{89+2*e}, v{r+2}, v{r+3}")
    E("s_nop 1")
    E("v_permlane16_swap_b32 v88, v90")
    E("v_permlane16_swap_b32 v89, v91")
    E("s_nop 1")
    E("s_cmp_lg_u32 s52, 0")
    E("s_cbranch_scc1 K2C_DONE")
    stamp(E, 6)
    E("s_mov_b32 s52, 1")
    E("s_add_u32 s29, s29, 1")
    E(f"s_mov_b32 s53, {UR2}")
    E("v_mov_b32 v10, v205")
    for e in range(4): E(f"v_mov_b32 v{214+e}, v{88+e}")
    E("s_barrier")
    E("s_branch K2C_LOOP")
    E.label("K2C_DONE")
    E("v_and_b32 v12, 1, v26")
    E("v_lshlrev_b32 v12, 9, v12")
    E("v_lshl_add_u32 v12, v25, 5, v12")
    E("v_lshrrev_b32 v13, 1, v26")
    E("v_lshl_add_u32 v12, v13, 4, v12")
    E(f"buffer_store_dwordx4 v[88:91], v12, s[{SWS}:{SWS+3}], s49 offen")
    E("s_cmp_lg_u32 s54, 0")
    E("s_cbranch_scc1 K2C_FIN")
    E("s_sub_u32 s49, s49, 4096")
    E(f"buffer_store_dwordx4 v[214:217], v12, s[{SWS}:{SWS+3}], s49 offen")
    E.label("K2C_FIN")
    E("s_lshl_b32 s48, s2, 7")
    E("s_lshl_b32 s49, s28, 2")
    E("s_add_u32 s48, s48, s49")
    E(f"s_add_u32 s48, s48, {FLG}")
    stamp(E, 7)
    E("s_waitcnt vmcnt(0)")
    flag_store(E, "s48", SWS)
    for i in range(8, 12): stamp(E, i)
    stamp_flush(E, 12, SWS, 1)
    E("s_endpgm")

def gen_k2(E):
    prologue(E, "k2_kernel")
    E(f"s_cmp_ge_u32 s2, {GRID}")
    E("s_cbranch_scc1 K2_END")
    E("v_and_b32 v1, 63, v0")
    E("v_lshrrev_b32 v2, 6, v0")
    E("v_readfirstlane_b32 s28, v2")
    if os.environ.get("SWAP", "1") == "1": E("s_xor_b32 s2, s2, 256")
    E("s_cmp_ge_u32 s2, 256")
    E("s_cbranch_scc1 K2_CONV")
    gemm(E)
    E.label("K2_CONV")
    conv(E)
    E.label("K2_END")
    E("s_endpgm")
```

```python
from gen_common import *
from gen_k2 import VM, kgen, TABW
VGPR = 256
LDS = 163840
SL = 24576
W1B = 24576
SCR = 155648
PAIR = 98304
CSA = 159744

def gen_k1(E):
    prologue(E, "k1_kernel")
    SX, SW, SWS, SDB, SWO = 8, 12, 16, 20, 24
    E("s_cmp_ge_u32 s2, 256")
    E("s_cbranch_scc1 K1_END")
    load_srds(E, [("u", SX), ("win", SW), ("ws", SWS), ("dbg", SDB), ("wout", SWO), ("wsp", 4)])
    E("v_and_b32 v1, 63, v0")
    E("v_lshrrev_b32 v2, 6, v0")
    E("v_readfirstlane_b32 s28, v2")
    stamp(E, 0)
    E("s_cmp_ge_u32 s2, 224")
    E("s_cbranch_scc1 K1_AUX")
    E("s_and_b32 s33, s2, 7")
    E("s_lshr_b32 s34, s2, 3")
    E("s_lshr_b32 s29, s33, 1")
    E("s_lshl_b32 s29, s29, 2")
    E("s_and_b32 s35, s34, 3")
    E("s_add_u32 s29, s29, s35")
    E("s_and_b32 s30, s33, 1")
    E("s_mul_i32 s30, s30, 7")
    E("s_lshr_b32 s35, s34, 2")
    E("s_add_u32 s30, s30, s35")
    E("s_and_b32 s31, s28, 3")
    E("s_lshr_b32 s32, s28, 2")
    E("v_lshrrev_b32 v6, 3, v1")
    E("v_and_b32 v7, 7, v1")
    E("v_lshrrev_b32 v8, 1, v6")
    E("v_xor_b32 v9, v7, v8")
    E("v_xor_b32 v10, 4, v9")
    E("s_lshl_b32 s33, s29, 7")
    E("s_lshl_b32 s34, s28, 4")
    E("s_add_u32 s34, s34, s33")
    E("v_add_u32 v11, s34, v6")
    E("v_mul_u32_u24 v11, 896, v11")
    E("v_lshl_add_u32 v3, v9, 4, v11")
    E("v_lshl_add_u32 v4, v10, 4, v11")
    E("v_add_u32 v4, 7168, v4")
    E("v_and_b32 v9, 1, v8")
    E("v_lshlrev_b32 v9, 2, v9")
    E("v_xor_b32 v9, v7, v9")
    E("s_lshl_b32 s34, s28, 3")
    E("v_add_u32 v11, s34, v6")
    E("v_mul_u32_u24 v11, 3584, v11")
    E("v_lshl_add_u32 v5, v9, 4, v11")
    E("s_lshl_b32 s34, s30, 7")
    E("v_add_u32 v5, s34, v5")
    E("s_lshl_b32 s36, s28, 11")
    E("s_lshl_b32 s37, s28, 10")
    E("s_waitcnt lgkmcnt(0)")
    V = VM(E)
    E("v_mov_b32 v30, 0")
    E("s_lshl_b32 s49, s29, 7")
    E(f"s_add_u32 s49, s49, {TAGW}")
    E(f"buffer_load_dword v31, v30, s[{SWS}:{SWS+3}], s49 offen")
    def issue(c, parts=(0, 1, 2)):
        slot = (c % 6) * SL
        if 0 in parts:
            E(f"s_add_u32 m0, s36, {slot}")
            E(f"s_mov_b32 s40, {c*128}")
            E(f"buffer_load_dwordx4 v3, s[{SX}:{SX+3}], s40 offen lds")
        if 1 in parts:
            E(f"s_add_u32 m0, s36, {slot+1024}")
            E(f"s_mov_b32 s41, {c*229376+1792}")
            E(f"buffer_load_dwordx4 v4, s[{SX}:{SX+3}], s40 offen lds")
        if 2 in parts:
            E(f"s_add_u32 m0, s37, {slot+16384}")
            E("s_nop 0")
            E(f"buffer_load_dwordx4 v5, s[{SW}:{SW+3}], s41 offen lds")
        for _ in parts: V.issue(("S", c))
    def issue_w1(c):
        E(f"s_add_u32 m0, s37, {W1B + c*8192}")
        E(f"s_mov_b32 s42, {c*229376}")
        E(f"buffer_load_dwordx4 v5, s[{SW}:{SW+3}], s42 offen lds")
        V.issue("W1")
    NI = int(os.environ.get("NI", "4"))
    for c in range(NI): issue(c)
    E("v_and_b32 v6, 31, v1")
    E("v_lshrrev_b32 v7, 5, v1")
    E("v_bfe_u32 v8, v6, 1, 3")
    E("v_xor_b32 v8, v8, v7")
    E("s_lshl_b32 s34, s31, 5")
    E("v_add_u32 v9, s34, v6")
    E("v_lshlrev_b32 v9, 7, v9")
    E("v_lshl_add_u32 v12, v8, 4, v9")
    E("s_lshl_b32 s45, s32, 1")
    E("s_xor_b32 s45, s45, s31")
    E("s_lshl_b32 s34, s45, 5")
    E("v_xor_b32 v12, s34, v12")
    for j in range(1, 4): E(f"v_xor_b32 v{12+j}, {32*j}, v12")
    for j in range(4): E(f"v_add_u32 v{16+j}, {3*SL}, v{12+j}")
    E("v_bfe_u32 v8, v1, 2, 2")
    E("v_lshl_add_u32 v9, v7, 3, v8")
    E("v_lshlrev_b32 v9, 7, v9")
    E("v_bfe_u32 v10, v1, 4, 1")
    E("v_lshlrev_b32 v10, 1, v10")
    E("v_bfe_u32 v11, v1, 1, 1")
    E("v_add_u32 v10, v10, v11")
    E("s_lshl_b32 s34, s32, 2")
    E("v_add_u32 v10, s34, v10")
    E("v_lshrrev_b32 v8, 1, v8")
    E("v_lshlrev_b32 v8, 2, v8")
    E("v_xor_b32 v10, v10, v8")
    E("v_lshl_add_u32 v9, v10, 4, v9")
    E("v_and_b32 v11, 1, v1")
    E("v_lshl_add_u32 v20, v11, 3, v9")
    E(f"v_add_u32 v25, {W1B}, v20")
    E("v_add_u32 v20, 16384, v20")
    E(f"v_add_u32 v21, {3*SL}, v20")
    E("s_lshl_b32 s43, s31, 1")
    E("s_add_u32 s43, s43, s32")
    E("v_bfe_u32 v8, v1, 2, 2")
    E("v_bfe_u32 v10, v1, 4, 1")
    E("v_lshl_add_u32 v8, v10, 3, v8")
    E("s_and_b32 s34, s30, 1")
    E("s_lshl_b32 s34, s34, 2")
    E("v_lshrrev_b32 v10, 5, v1")
    E("v_lshlrev_b32 v10, 1, v10")
    E("v_bfe_u32 v11, v1, 1, 1")
    E("v_add3_u32 v10, v10, v11, s34")
    E("v_lshrrev_b32 v11, 1, v8")
    E("v_xor_b32 v10, v10, v11")
    E("v_lshlrev_b32 v8, 7, v8")
    E("v_lshl_add_u32 v8, v10, 4, v8")
    E("v_and_b32 v11, 1, v1")
    E("v_lshl_add_u32 v8, v11, 3, v8")
    E("s_lshr_b32 s38, s30, 1")
    E("s_cmp_eq_u32 s38, 6")
    E("s_cselect_b32 s34, 0, s38")
    E(f"s_mul_i32 s34, s34, {SL}")
    E("s_lshl_b32 s35, s43, 11")
    E("s_add_u32 s34, s34, s35")
    E("v_xor_b32 v23, 32, v8")
    E("v_add_u32 v22, s34, v8")
    E("v_add_u32 v23, s34, v23")
    E("v_add_u32 v23, 512, v23")
    E("v_lshlrev_b32 v24, 4, v1")
    E("v_mov_b32 v30, 0")
    E("s_mov_b32 s44, 0x3f803f80")
    ACC2, ACC1, XF, WFR = 32, 48, 64, 176
    SSUM, SSQ, SC2, SC1 = 208, 212, 216, 220
    XG = 26
    for r in range(208, 224): E(f"v_mov_b32 v{r}, 0")
    E("v_lshrrev_b32 v6, 2, v1")
    E("v_lshrrev_b32 v7, 4, v1")
    E("v_xor_b32 v6, v6, v7")
    E("v_and_b32 v6, 1, v6")
    E("v_add_u32 v6, -1, v6")
    for r in range(232, 236): E(f"v_and_b32 v{r}, s44, v6")
    E(f"v_mov_b32 v242, {f32hex(GELU_K1)}")
    E(f"v_mov_b32 v243, {f32hex(GELU_K2)}")
    E("v_mov_b32 v244, 1.0")
    E("v_mov_b32 v245, 1.0")
    E("s_lshl_b32 s34, s28, 9")
    E(f"s_add_u32 s34, s34, {SCR}")
    E("v_and_b32 v6, 31, v1")
    E("v_lshl_add_u32 v246, v6, 3, s34")
    E("v_bfe_u32 v7, v1, 4, 1")
    E("s_lshl_b32 s35, s32, 7")
    E("s_add_u32 s34, s34, s35")
    E("v_lshl_add_u32 v249, v7, 6, s34")
    E("s_lshl_b32 s34, s31, 8")
    E(f"s_add_u32 s34, s34, {PAIR}")
    E("v_lshl_add_u32 v250, v6, 3, s34")
    E("s_lshl_b32 s34, s32, 9")
    E(f"s_add_u32 s34, s34, {CSA}")
    E("v_and_b32 v6, 31, v1")
    E("v_lshl_add_u32 v255, v6, 4, s34")
    E("s_lshl_b32 s35, s31, 2")
    E("v_add_u32 v254, s35, v255")
    E("s_lshl_b32 s34, s31, 9")
    E(f"s_add_u32 s34, s34, {CSA + 2048}")
    E("v_lshl_add_u32 v247, v6, 4, s34")
    E("s_lshl_b32 s35, s32, 3")
    E("v_add_u32 v251, s35, v247")
    E("s_lshl_b32 s34, s28, 9")
    E(f"s_add_u32 s34, s34, {SCR + 256}")
    E("v_lshl_add_u32 v252, v6, 2, s34")
    E("v_lshrrev_b32 v7, 5, v1")
    E("v_lshl_add_u32 v253, v7, 4, s34")
    for j in range(4):
        E(f"s_xor_b32 s34, s45, {j}")
        E("s_lshl_b32 s34, s34, 11")
        E(f"v_add_u32 v{6+j}, s34, v20")
        E(f"v_add_u32 v{236+j}, s34, v21")
    def reads(c):
        slot = c % 6; hi = slot >= 3; so = (slot % 3) * SL
        for j in range(4):
            a = (16 if hi else 12) + j; b = (236 if hi else 6) + j; x = XF + 16 * c + 4 * j; f = WFR + 16 * (c & 1) + 4 * j
            E(f"ds_read_b128 v[{x}:{x+3}], v{a} offset:{so}")
            for h in range(2):
                E(f"ds_read_b64_tr_b16 v[{f+2*h}:{f+1+2*h}], v{b} offset:{so + h*512}")
    def mm(c, j):
        x = XF + 16 * c + 4 * j; f = WFR + 16 * (c & 1) + 4 * j
        c2 = "0" if (c == 0 and j == 0) else f"v[{ACC2}:{ACC2+15}]"
        E(f"v_mfma_f32_32x32x16_bf16 v[{ACC2}:{ACC2+15}], v[{f}:{f+3}], v[{x}:{x+3}], {c2}")
        xs = XF + 16 * c + 4 * (j >> 1) + 2 * (j & 1)
        for k in range(2):
            E(f"v_lshlrev_b32 v{224+2*k}, 16, v{xs+k}")
            E(f"v_and_b32 v{225+2*k}, 0xffff0000, v{xs+k}")
        if j < 2: E(f"v_mfma_f32_16x16x32_bf16 v[{SSUM}:{SSUM+3}], v[232:235], v[{x}:{x+3}], v[{SSUM}:{SSUM+3}]")
        if j == 2:
            f0 = WFR + 16 * (c & 1)
            E(f"v_mfma_f32_16x16x32_bf16 v[{SC2}:{SC2+3}], v[232:235], v[{f0}:{f0+3}], v[{SC2}:{SC2+3}]")
        for k in range(4): E(f"v_fmac_f32 v{SSQ+k}, v{224+k}, v{224+k}")
    w1n = [0]
    for i in range(8):
        if i < 7:
            V.wait(("S", i))
            E("s_waitcnt lgkmcnt(0)")
            E("s_barrier")
            if i in (0, 3, 6): stamp(E, {0: 1, 3: 2, 6: 3}[i])
            E(f"s_cmp_lg_u32 s38, {i}")
            E(f"s_cbranch_scc1 K1_NOGRAB{i}")
            E(f"ds_read_b64_tr_b16 v[{XG}:{XG+1}], v22")
            E(f"ds_read_b64_tr_b16 v[{XG+2}:{XG+3}], v23")
            E.label(f"K1_NOGRAB{i}")
            reads(i)
        else:
            E("s_waitcnt lgkmcnt(0)")
        if i == 0:
            for c in range(NI, 6): issue(c)
            continue
        for j in range(4):
            mm(i - 1, j)
            if i == 1 and j < 3: issue(6, (j,))
            if i in (2, 3, 4) and j < 3 and w1n[0] < 7: issue_w1(w1n[0]); w1n[0] += 1
            if i == 5 and j == 3:
                E("s_lshl_b32 s34, s2, 3")
                E("s_add_u32 s34, s34, s28")
                E("s_mul_i32 s34, s34, 4736")
                E("v_min_u32 v4, 36, v1")
                E("v_lshlrev_b32 v4, 7, v4")
                E("buffer_load_dword v4, v4, s[4:7], s34 offen")
                V.issue("pf")
    stamp(E, 4)
    def red4(r):
        E(f"v_add_f32 v{r}, v{r}, v{r+1}")
        E(f"v_add_f32 v{r+2}, v{r+2}, v{r+3}")
        E(f"v_add_f32 v{r}, v{r}, v{r+2}")
        E(f"v_mov_b32 v{r+1}, v{r}")
        E(f"v_permlane32_swap_b32 v{r}, v{r+1}")
        E(f"v_add_f32 v{r}, v{r}, v{r+1}")
    red4(SSQ)
    E(f"v_mov_b32 v{SSUM+1}, v{SSQ}")
    E(f"ds_write_b64 v251, v[{SSUM}:{SSUM+1}]")
    E(f"ds_write_b32 v254, v{SC2} offset:1024")
    for j in range(4): E(f"v_add_u32 v{6+j}, {W1B - 16384}, v{6+j}")
    E("s_waitcnt lgkmcnt(0)")
    E("s_barrier")
    CS, T = 176, 192
    E("ds_read_b128 v[224:227], v255 offset:1024")
    E("ds_read_b128 v[228:231], v247")
    E("s_waitcnt lgkmcnt(1)")
    E("v_add_f32 v224, v224, v225")
    E("v_add_f32 v226, v226, v227")
    E("v_add_f32 v224, v224, v226")
    E("ds_write_b32 v252, v224")
    for o in range(4): E(f"ds_read_b128 v[{CS+4*o}:{CS+4*o+3}], v253 offset:{32*o}")
    E("s_waitcnt lgkmcnt(5)")
    E("v_add_f32 v240, v228, v230")
    E("v_add_f32 v241, v229, v231")
    def ln_stats(m, q, n):
        E(f"v_mul_f32 v{m}, {f32hex(1.0/n)}, v{m}")
        E(f"v_mul_f32 v{q}, {f32hex(1.0/n)}, v{q}")
        E(f"v_fma_f32 v{q}, -v{m}, v{m}, v{q}")
        E(f"v_max_f32 v{q}, 0, v{q}")
        bf16r(E, f"v{m}", f"v{m}"); bf16r(E, f"v{q}", f"v{q}")
        E(f"v_add_f32 v{q}, {f32hex(1e-5)}, v{q}")
        bf16r(E, f"v{q}", f"v{q}")
        E(f"v_sqrt_f32 v{q}, v{q}")
        bf16r(E, f"v{q}", f"v{q}")
        E(f"v_rcp_f32 v{q}, v{q}")
    ln_stats(240, 241, 448)
    E("ds_write_b64 v246, v[240:241]")
    def gelu_block(acc, CS=176):
        P = lambda r: f"v[{r}:{r+1}]"
        idx = range(0, 16, 2)
        for i in idx: E(f"v_pk_fma_f32 {P(acc+i)}, {P(CS+i)}, v[240:241], {P(acc+i)} op_sel:[0,0,0] op_sel_hi:[1,0,1] neg_lo:[1,0,0] neg_hi:[1,0,0]")
        for i in idx: E(f"v_pk_mul_f32 {P(acc+i)}, {P(acc+i)}, v[240:241] op_sel:[0,1] op_sel_hi:[1,1]")
        for i in idx: E(f"v_pk_mul_f32 {P(T+i)}, {P(acc+i)}, {P(acc+i)}")
        for i in idx: E(f"v_pk_fma_f32 {P(T+i)}, {P(T+i)}, v[242:243], v[242:243] op_sel:[0,1,0] op_sel_hi:[1,1,0]")
        for i in idx: E(f"v_pk_mul_f32 {P(T+i)}, {P(T+i)}, {P(acc+i)}")
        for i in range(16): E(f"v_exp_f32 v{T+i}, v{T+i}")
        for i in idx: E(f"v_pk_add_f32 {P(T+i)}, {P(T+i)}, v[244:245]")
        for i in range(16): E(f"v_rcp_f32 v{T+i}, v{T+i}")
        for i in idx: E(f"v_pk_mul_f32 {P(acc+i)}, {P(acc+i)}, {P(T+i)}")
    E("s_waitcnt lgkmcnt(1)")
    gelu_block(ACC2)
    E(f"v_pk_add_f32 v[224:225], v[{ACC2}:{ACC2+1}], v[{ACC2+2}:{ACC2+3}]")
    E(f"v_pk_mul_f32 v[226:227], v[{ACC2}:{ACC2+1}], v[{ACC2}:{ACC2+1}]")
    E(f"v_pk_add_f32 v[228:229], v[{ACC2+4}:{ACC2+5}], v[{ACC2+6}:{ACC2+7}]")
    E(f"v_pk_mul_f32 v[230:231], v[{ACC2+2}:{ACC2+3}], v[{ACC2+2}:{ACC2+3}]")
    for i in range(4, 16, 2):
        q = 226 + 4 * ((i >> 1) & 1)
        E(f"v_pk_fma_f32 v[{q}:{q+1}], v[{ACC2+i}:{ACC2+i+1}], v[{ACC2+i}:{ACC2+i+1}], v[{q}:{q+1}]")
        if i >= 8:
            sr = 224 + 4 * ((i >> 1) & 1)
            E(f"v_pk_add_f32 v[{sr}:{sr+1}], v[{sr}:{sr+1}], v[{ACC2+i}:{ACC2+i+1}]")
    E("v_pk_add_f32 v[224:225], v[224:225], v[228:229]")
    E("v_pk_add_f32 v[226:227], v[226:227], v[230:231]")
    E("v_add_f32 v224, v224, v225")
    E("v_add_f32 v225, v226, v227")
    E("v_mov_b32 v226, v224")
    E("v_mov_b32 v227, v225")
    E("v_permlane32_swap_b32 v224, v226")
    E("v_permlane32_swap_b32 v225, v227")
    E("v_pk_add_f32 v[224:225], v[224:225], v[226:227]")
    E("s_cmp_eq_u32 s32, 0")
    E("s_cbranch_scc1 K1_NOPW")
    E("ds_write_b64 v250, v[224:225]")
    E.label("K1_NOPW")
    V.wait("W1")
    E("v_add_u32 v31, 1, v31")
    E("s_waitcnt lgkmcnt(0)")
    stamp(E, 5)
    E("s_barrier")
    E("ds_read_b64 v[228:229], v250")
    E("s_lshl_b32 s34, s29, 2")
    E("s_add_u32 s39, s34, s31")
    E("s_mul_i32 s34, s39, 7168")
    E(f"s_add_u32 s47, s34, {PST}")
    E("s_lshl_b32 s35, s30, 1")
    E("s_add_u32 s48, s35, s32")
    E("s_lshl_b32 s35, s30, 9")
    E("s_add_u32 s34, s47, s35")
    order = [4 * c for c in range(7)] + [k for k in range(28) if k % 4]
    def w1reads(i):
        f = WFR + 4 * (i % 8); ks = order[i]
        for h in range(2):
            E(f"ds_read_b64_tr_b16 v[{f+2*h}:{f+1+2*h}], v{6 + (ks & 3)} offset:{(ks >> 2)*8192 + h*512}")
    for ks in range(6): w1reads(ks)
    E("s_cmp_lg_u32 s32, 0")
    E("s_cbranch_scc1 K1_NOPUB")
    E("s_waitcnt lgkmcnt(12)")
    E("v_add_f32 v224, v224, v228")
    E("v_add_f32 v226, v225, v229")
    E("v_mov_b32 v225, v31")
    E("v_mov_b32 v227, v31")
    E("s_mov_b32 exec_hi, 0")
    E(f"buffer_store_dwordx4 v[224:227], v24, s[{SWS}:{SWS+3}], s34 offen sc1")
    E("s_mov_b64 exec, -1")
    E.label("K1_NOPUB")
    stamp(E, 6)
    lq = [("w", k) for k in range(6) for _ in range(2)]
    def lwait(tag):
        idx = max(i for i, t in enumerate(lq) if t == tag)
        E(f"s_waitcnt lgkmcnt({min(15, len(lq) - 1 - idx)})")
    XW = 224
    for ks in range(28):
        lwait(("w", ks))
        x = XF + 4 * order[ks]; f = WFR + 4 * (ks % 8)
        c1 = "0" if ks == 0 else f"v[{ACC1}:{ACC1+15}]"
        E(f"v_mfma_f32_32x32x16_bf16 v[{ACC1}:{ACC1+15}], v[{f}:{f+3}], v[{x}:{x+3}], {c1}")
        if ks + 6 < 28: w1reads(ks + 6); lq += [("w", ks + 6)] * 2
        if ks < 7:
            E(f"v_mfma_f32_16x16x32_bf16 v[{SC1}:{SC1+3}], v[232:235], v[{f}:{f+3}], v[{SC1}:{SC1+3}]")
        if ks == 9:
            E(f"ds_write_b32 v254, v{SC1}")
            lq.append("a")
        if ks == 18:
            lwait("a")
            E("s_barrier")
            E("ds_read_b128 v[224:227], v255")
            lq.append("b")
        if ks == 22:
            lwait("b")
            E("v_add_f32 v224, v224, v225")
            E("v_add_f32 v226, v226, v227")
            E("v_add_f32 v224, v224, v226")
            E("ds_write_b32 v252, v224")
            for o in range(4): E(f"ds_read_b128 v[{208+4*o}:{211+4*o}], v253 offset:{32*o}")
            lq += ["c"] * 5
    for o in range(4): E(f"ds_read_b128 v[{148+4*o}:{151+4*o}], v249 offset:{16*o}")
    E("s_mov_b32 s46, 0")
    E("s_add_u32 s53, s47, 4096")
    GR = 112
    def ld_gran():
        for i in range(7):
            E(f"buffer_load_dwordx4 v[{GR+4*i}:{GR+4*i+3}], v24, s[{SWS}:{SWS+3}], s{47 if i < 4 else 53} offen offset:{1024*(i%4)} sc1")
    stamp(E, 7)
    ld_gran()
    E("s_waitcnt lgkmcnt(4)")
    gelu_block(ACC1, 208)
    for o in range(4):
        d = 64 + 4 * (o & 1) + 2 * (o >> 1)
        E(f"v_cvt_pk_bf16_f32 v{d}, v{ACC1+4*o}, v{ACC1+4*o+1}")
        E(f"v_cvt_pk_bf16_f32 v{d+1}, v{ACC1+4*o+2}, v{ACC1+4*o+3}")
    E("v_bfe_u32 v2, v1, 4, 1")
    E("v_mul_u32_u24 v2, 28672, v2")
    E("v_lshrrev_b32 v7, 5, v1")
    E("v_lshl_add_u32 v2, v7, 8, v2")
    E("v_and_b32 v7, 15, v1")
    E("v_lshl_add_u32 v2, v7, 4, v2")
    E("s_mul_i32 s34, s39, 57344")
    E("s_lshl_b32 s35, s48, 10")
    E("s_add_u32 s34, s34, s35")
    E(f"s_add_u32 s54, s34, {Z1F}")
    EARLY = int(os.environ.get("EARLY", "1"))
    if EARLY >= 1:
        E(f"buffer_store_dwordx4 v[64:67], v2, s[{SWS}:{SWS+3}], s54 offen")
        E(f"buffer_store_dwordx4 v[68:71], v2, s[{SWS}:{SWS+3}], s54 offen offset:512")
    E("s_waitcnt lgkmcnt(0)")
    for i in range(8):
        src = XG + i // 2
        if i & 1: E(f"v_and_b32 v{72+i}, 0xffff0000, v{src}")
        else: E(f"v_lshlrev_b32 v{72+i}, 16, v{src}")
    for i in range(8): E(f"v_sub_f32 v{72+i}, v{72+i}, v{148+2*i}")
    for i in range(0, 8, 2): E(f"v_cvt_pk_bf16_f32 v{84+i//2}, v{72+i}, v{73+i}")
    for i in range(8):
        src = 84 + i // 2
        if i & 1: E(f"v_and_b32 v{72+i}, 0xffff0000, v{src}")
        else: E(f"v_lshlrev_b32 v{72+i}, 16, v{src}")
    for i in range(8): E(f"v_mul_f32 v{72+i}, v{72+i}, v{149+2*i}")
    for i in range(4): E(f"v_cvt_pk_bf16_f32 v{84+i}, v{79-2*i}, v{78-2*i}")
    E("v_lshrrev_b32 v3, 5, v1")
    E("v_and_b32 v7, 15, v1")
    E("v_lshl_add_u32 v3, v3, 4, v7")
    E(f"v_mul_u32_u24 v3, {XS}, v3")
    E("v_bfe_u32 v7, v1, 4, 1")
    E("v_lshlrev_b32 v7, 4, v7")
    E("v_sub_u32 v3, v3, v7")
    E("v_add_u32 v3, 16, v3")
    E("s_lshl_b32 s34, s43, 4")
    E("s_add_u32 s34, s34, s33")
    E("s_sub_u32 s34, 2032, s34")
    E("s_lshl_b32 s34, s34, 1")
    E(f"s_mul_i32 s35, s30, {32*XS}")
    E("s_add_u32 s34, s34, s35")
    E(f"s_add_u32 s55, s34, {XNT}")
    if EARLY >= 2:
        E(f"buffer_store_dwordx4 v[84:87], v3, s[{SWS}:{SWS+3}], s55 offen{XNOSC}")
    E("v_and_b32 v6, 31, v1")
    E("v_mul_u32_u24 v6, 72, v6")
    E("v_lshrrev_b32 v7, 5, v1")
    E("v_lshl_add_u32 v6, v7, 3, v6")
    E("s_mul_i32 s34, s28, 2304")
    E("v_add_u32 v6, s34, v6")
    E("v_lshrrev_b32 v7, 4, v1")
    E("v_bfe_u32 v8, v1, 2, 2")
    E("v_lshl_add_u32 v7, v7, 3, v8")
    E("v_mul_u32_u24 v7, 72, v7")
    E("v_and_b32 v8, 3, v1")
    E("v_lshl_add_u32 v7, v8, 3, v7")
    E("v_add_u32 v7, s34, v7")
    for a in range(2):
        E("s_lshl_b32 s34, s48, 1")
        E(f"s_add_u32 s34, s34, {a}")
        E("s_mul_i32 s35, s34, 37")
        E("s_lshr_b32 s35, s35, 8")
        E("s_mul_i32 s40, s35, 7")
        E("s_sub_u32 s34, s34, s40")
        E("s_lshl_b32 s35, s35, 6")
        E("s_add_u32 s35, s35, s39")
        E("s_mul_i32 s35, s35, 7")
        E("s_add_u32 s34, s34, s35")
        E(f"s_lshl_b32 s{50+a}, s34, 10")
    stamp(E, 8)
    E(f"s_waitcnt vmcnt({[0, 2, 3][EARLY]})")
    E("s_branch K1_POLL2C")
    E.label("K1_POLL2")
    E("s_waitcnt vmcnt(0)")
    E.label("K1_POLL2C")
    E("v_mov_b32 v8, 0")
    for i in range(7):
        E(f"v_xor_b32 v{GR+4*i+1}, v31, v{GR+4*i+1}")
        E(f"v_xor_b32 v{GR+4*i+3}, v31, v{GR+4*i+3}")
        E(f"v_or3_b32 v8, v8, v{GR+4*i+1}, v{GR+4*i+3}")
    E("v_cmp_ne_u32 vcc, 0, v8")
    E("s_nop 4")
    E("s_cbranch_vccz K1_POLL2_OK")
    E("s_sleep 1")
    ld_gran()
    E("s_add_u32 s46, s46, 1")
    E("s_cmp_lt_u32 s46, 0x40000")
    E("s_cbranch_scc1 K1_POLL2")
    E("s_waitcnt vmcnt(0)")
    E.label("K1_POLL2_OK")
    stamp(E, 9)
    E("s_or_b32 s34, s30, s28")
    E("s_cmp_lg_u32 s34, 0")
    E("s_cbranch_scc1 K1_NOTAGW")
    E("s_mov_b64 exec, 1")
    E(f"buffer_store_dword v31, v30, s[{SWS}:{SWS+3}], s49 offen sc1")
    E("s_mov_b64 exec, -1")
    E.label("K1_NOTAGW")
    if EARLY < 1:
        E(f"buffer_store_dwordx4 v[64:67], v2, s[{SWS}:{SWS+3}], s54 offen")
        E(f"buffer_store_dwordx4 v[68:71], v2, s[{SWS}:{SWS+3}], s54 offen offset:512")
    if EARLY < 2:
        E(f"buffer_store_dwordx4 v[84:87], v3, s[{SWS}:{SWS+3}], s55 offen{XNOSC}")
    regs = [GR + 4 * i for i in range(7)]
    while len(regs) > 1:
        nxt = []
        for i in range(0, len(regs) - 1, 2):
            E(f"v_add_f32 v{regs[i]}, v{regs[i]}, v{regs[i+1]}")
            E(f"v_add_f32 v{regs[i]+2}, v{regs[i]+2}, v{regs[i+1]+2}")
            nxt.append(regs[i])
        if len(regs) & 1: nxt.append(regs[-1])
        regs = nxt
    E("v_mov_b32 v116, v112")
    E("v_mov_b32 v117, v114")
    E("v_mov_b32 v118, v116")
    E("v_mov_b32 v119, v117")
    E("v_permlane32_swap_b32 v116, v118")
    E("v_permlane32_swap_b32 v117, v119")
    E("v_add_f32 v116, v116, v118")
    E("v_add_f32 v117, v117, v119")
    ln_stats(116, 117, 896)
    E("v_mul_f32 v116, v116, v117")
    for i in range(0, 16, 2):
        E(f"v_pk_fma_f32 v[{ACC2+i}:{ACC2+i+1}], v[{ACC2+i}:{ACC2+i+1}], v[116:117], v[116:117] op_sel:[0,1,0] op_sel_hi:[1,1,0] neg_lo:[0,0,1] neg_hi:[0,0,1]")
    for i in range(8): E(f"v_cvt_pk_bf16_f32 v{96+i}, v{ACC2+2*i}, v{ACC2+2*i+1}")
    for o in range(4): E(f"ds_write_b64 v6, v[{96+2*o}:{97+2*o}] offset:{16*o}")
    E("s_waitcnt lgkmcnt(0)")
    for a in range(2):
        for h in range(2):
            E(f"ds_read_b64_tr_b16 v[{104+4*a+2*h}:{105+4*a+2*h}], v7 offset:{288*h+32*a}")
    E("s_waitcnt lgkmcnt(2)")
    E(f"buffer_store_dwordx4 v[104:107], v24, s[{SWS}:{SWS+3}], s50 offen")
    E("s_waitcnt lgkmcnt(0)")
    E(f"buffer_store_dwordx4 v[108:111], v24, s[{SWS}:{SWS+3}], s51 offen")
    stamp(E, 10)
    stamp_flush(E, 11, SWS, 0)
    E("s_endpgm")

    E.label("K1_AUX")
    WOFB, GS = 132352, 66176
    E("s_sub_u32 s29, s2, 224")
    E("s_waitcnt lgkmcnt(0)")
    load_srds(E, [("lar", 32), ("aim", 36), ("cre", 40), ("cim", 44), ("ldt", 8)])
    E("v_mov_b32 v30, 0")
    E("v_lshlrev_b32 v3, 4, v1")
    E("s_mul_i32 s56, s29, 28672")
    E("s_lshl_b32 s57, s28, 10")
    E("s_add_u32 s56, s56, s57")
    E("s_and_b32 s30, s28, 3")
    E("s_lshr_b32 s31, s28, 2")
    E(f"s_mul_i32 s12, s31, {GS}")
    E("v_and_b32 v2, 255, v0")
    E("v_lshlrev_b32 v4, 4, v2")
    E("v_lshlrev_b32 v2, 1, v2")
    E("s_mul_i32 s13, s29, 6")
    E("s_add_u32 s13, s13, s31")
    E("v_and_b32 v25, 15, v1")
    E("v_lshrrev_b32 v26, 4, v1")
    E("s_waitcnt lgkmcnt(0)")
    for r in range(3):
        E(f"s_add_u32 s48, s13, {2*r}")
        E("s_lshl_b32 s49, s48, 2")
        E("s_add_u32 s49, s49, 2")
        E("s_lshl_b32 s48, s49, 8")
        E(f"buffer_load_ushort v{216+r}, v30, s[8:11], s49 offen")
        for k, sr in enumerate((32, 36, 40, 44)):
            E(f"buffer_load_ushort v{200+4*r+k}, v2, s[{sr}:{sr+3}], s48 offen")
    E("s_lshl_b32 s50, s29, 3")
    E("s_add_u32 s50, s50, s28")
    E("s_mul_i32 s51, s50, 896")
    E("s_lshl_b32 s50, s50, 15")
    E("v_lshlrev_b32 v22, 7, v1")
    E("v_min_u32 v23, 6, v1")
    E("v_lshlrev_b32 v23, 7, v23")
    E(f"v_add_u32 v24, {4*TABW}, v4")
    E("v_add_u32 v24, s12, v24")
    E("s_mov_b32 s15, 0")
    E("s_waitcnt vmcnt(10)")
    stamp(E, 1)
    for k, sr in enumerate((32, 36, 40, 44)):
        E(f"buffer_load_dword v{16+k}, v23, s[{sr}:{sr+3}], s51 offen")
    for i in range(3):
        E(f"s_add_u32 m0, s57, {WOFB + 8192*i}")
        E(f"s_add_u32 s48, s56, {8192*i}")
        E(f"buffer_load_dwordx4 v3, s[{SWO}:{SWO+3}], s48 offen lds")
    for k in range(4): E(f"v_mov_b32 v{220+k}, 0")
    E("v_lshlrev_b32 v224, 4, v1")
    E("s_lshr_b32 s48, s50, 5")
    E(f"s_add_u32 s48, s48, {FLG}")
    E(f"buffer_store_dwordx4 v[220:223], v224, s[{SWS}:{SWS+3}], s48 offen sc1")
    E("s_waitcnt vmcnt(8)")
    E("s_cmp_lg_u32 s31, 0")
    E("s_cbranch_scc1 K1A_LOOP")
    E(f"s_add_u32 m0, s57, {WOFB + 8192*3}")
    E(f"s_add_u32 s48, s56, {8192*3}")
    E(f"buffer_load_dwordx4 v3, s[{SWO}:{SWO+3}], s48 offen lds")
    E.label("K1A_LOOP")
    for k in range(4): E(f"v_mov_b32 v{5+k}, v{200+k}")
    E("v_lshlrev_b32 v9, 16, v216")
    for k in range(8): E(f"v_mov_b32 v{200+k}, v{204+k}")
    for k in range(2): E(f"v_mov_b32 v{216+k}, v{217+k}")
    stamp(E, 3)
    kgen(E, "K1A", "s30", "s12", 4 * TABW, stamps=4)
    E("s_cmp_lg_u32 s15, 1")
    E("s_cbranch_scc1 K1A_NOWOF")
    E("s_cmp_ge_u32 s29, 28")
    E("s_cbranch_scc1 K1A_NOWOF")
    E("v_lshrrev_b32 v225, 2, v1")
    E("v_mul_u32_u24 v225, 896, v225")
    E("v_and_b32 v226, 3, v1")
    E("v_lshl_add_u32 v225, v226, 4, v225")
    E("s_lshr_b32 s48, s30, 1")
    E("s_lshl_b32 s48, s48, 6")
    E("s_and_b32 s49, s30, 1")
    E("s_lshl_b32 s49, s49, 3")
    E("s_add_u32 s48, s48, s49")
    E("s_mul_i32 s49, s31, 384")
    E("s_add_u32 s48, s48, s49")
    E(f"s_add_u32 s48, s48, {WOFB}")
    E("v_add_u32 v225, s48, v225")
    for i in range(4):
        E(f"ds_read_b64_tr_b16 v[{228+4*i}:{229+4*i}], v225 offset:{128*i}")
        E(f"ds_read_b64_tr_b16 v[{230+4*i}:{231+4*i}], v225 offset:{128*i + 16*896}")
    E("s_mul_i32 s48, s30, 28672")
    E("s_lshl_b32 s49, s29, 10")
    E("s_add_u32 s48, s48, s49")
    E(f"s_mul_i32 s49, s31, {3*114688}")
    E("s_add_u32 s48, s48, s49")
    for i in range(4):
        E(f"s_add_u32 s49, s48, {WOF + i*114688}")
        E(f"s_waitcnt lgkmcnt({6 - 2*i})")
        E(f"buffer_store_dwordx4 v[{228+4*i}:{231+4*i}], v3, s[{SWS}:{SWS+3}], s49 offen")
    E("s_branch K1A_W2")
    E.label("K1A_NOWOF")
    E("s_waitcnt vmcnt(0)")
    E.label("K1A_W2")
    E("ds_read_b128 v[32:35], v24")
    E("s_lshl_b32 s48, s13, 12")
    E(f"s_add_u32 s48, s48, {KPG}")
    E("s_add_u32 s13, s13, 2")
    E("s_add_u32 s15, s15, 1")
    E("s_cmp_lt_u32 s15, 3")
    E("s_waitcnt lgkmcnt(0)")
    E(f"buffer_store_dwordx4 v[32:35], v4, s[{SWS}:{SWS+3}], s48 offen")
    E("s_cbranch_scc1 K1A_LOOP")
    stamp(E, 2)
    if STAMPS:
        for i in range(9, 11): stamp(E, i)
        stamp_flush(E, 11, SWS, 0)
    E.label("K1_END")
    E("s_endpgm")
```

```python
from gen_common import *
import math
VGPR = 256
GRID = 512
LDS = 81920
LASTR = os.environ.get("LASTR", "1") == "1"
DBG3 = os.environ.get("DBG3", "0") == "1"
HSC = os.environ.get("HSC", " sc1")
XMAP = os.environ.get("XMAP", "0") == "1"
RERD = os.environ.get("RERD", "0") == "1"
PACE = int(os.environ.get("PACE", "12"))

class VM:
    def __init__(s, E): s.E = E; s.q = []; s.done = 0
    def issue(s, tag): s.q.append(tag)
    def wait(s, tag):
        idx = max(i for i, t in enumerate(s.q) if t == tag)
        if idx < s.done: return
        n = len(s.q) - 1 - idx
        assert n < 64
        s.E(f"s_waitcnt vmcnt({n})"); s.done = idx + 1

def gemm(E):
    SWSP, SWS, SB = 8, 12, 16
    SX, SO = 20, 24
    load_srds(E, [("wsp", SWSP), ("ws", SWS), ("bsp", SB), ("u", SX), ("out", SO)])
    stamp(E, 0)
    E("s_and_b32 s48, s2, 7")
    E("s_lshr_b32 s49, s2, 3")
    E("s_lshr_b32 s29, s48, 1")
    E("s_lshl_b32 s29, s29, 3")
    E("s_and_b32 s50, s49, 7")
    E("s_add_u32 s29, s29, s50")
    E("s_and_b32 s30, s48, 1")
    E("s_lshl_b32 s30, s30, 2")
    E("s_lshr_b32 s50, s49, 3")
    E("s_add_u32 s30, s30, s50")
    if XMAP:
        E("s_lshl_b32 s29, s48, 2")
        E("s_and_b32 s50, s49, 3")
        E("s_add_u32 s29, s29, s50")
        E("s_lshr_b32 s30, s49, 2")
    E("v_lshrrev_b32 v8, 3, v1")
    E("v_and_b32 v9, 7, v1")
    E("v_lshrrev_b32 v10, 4, v1")
    E("v_xor_b32 v9, v9, v10")
    E("v_lshlrev_b32 v8, 12, v8")
    E("v_lshl_add_u32 v2, v9, 4, v8")
    E("v_xor_b32 v3, 64, v2")
    E("s_lshl_b32 s48, s29, 18")
    E("s_lshl_b32 s49, s28, 10")
    E("s_add_u32 s48, s48, s49")
    E("s_lshl_b32 s49, s28, 1")
    for q in range(8):
        E(f"s_xor_b32 s50, s49, {q}")
        E("s_lshl_b32 s50, s50, 15")
        E(f"s_add_u32 s{32+q}, s48, s50")
    E("s_lshl_b32 s31, s28, 14")
    E("v_lshlrev_b32 v6, 4, v1")
    E("v_add_u32 v7, 4096, v6")
    E("s_lshl_b32 s40, s30, 6")
    E("s_lshl_b32 s49, s28, 4")
    E("s_add_u32 s40, s40, s49")
    E("s_mul_i32 s40, s40, 7168")
    E("s_and_b32 s44, s30, 1")
    E("s_lshl_b32 s45, s44, 10")
    E("v_add_u32 v14, s45, v6")
    E("v_add_u32 v15, 4096, v14")
    E("s_cmp_eq_u32 s44, 0")
    E("s_cselect_b32 s45, 6144, 0")
    E("v_add_u32 v244, s45, v6")
    V = VM(E)
    ACC, ZB, WF = 16, 128, 212
    E("s_waitcnt lgkmcnt(0)")
    def wdma(kp, q):
        E(f"s_add_u32 m0, s31, {(kp & 1) * 8192 + q * 1024}")
        E(f"buffer_load_dwordx4 v{2 + (q & 1)}, s[{SWSP}:{SWSP+3}], s{32+q} offen lds")
        V.issue(("W", kp))
        if q == 7:
            E("v_add_u32 v2, 128, v2")
            E("v_add_u32 v3, 128, v3")
    def zbase(ks): E(f"s_add_u32 s41, s40, {ks * 7168}")
    def zld(ks, a):
        r = ZB + 28 * (ks % 3) + 4 * a
        if a < 6: E(f"buffer_load_dwordx4 v[{r}:{r+3}], v{14 + (a >> 2)}, s[{SWS}:{SWS+3}], s41 offen offset:{(a & 3) * 1024}")
        else: E(f"buffer_load_dwordx4 v[{r}:{r+3}], v244, s[{SWS}:{SWS+3}], s41 offen")
        V.issue(("Z", ks, a))
    for q in range(8): wdma(0, q)
    zbase(0)
    for a in range(7): zld(0, a)
    zbase(1)
    for a in range(7): zld(1, a)
    for q in range(8): wdma(1, q)
    ZD = int(os.environ.get("ZD", "3"))
    if ZD == 3:
        zbase(2)
        for a in range(7): zld(2, a)
    E("v_and_b32 v8, 15, v1")
    E("v_bfe_u32 v9, v1, 1, 3")
    E("v_xor_b32 v9, v9, v10")
    E("v_lshlrev_b32 v8, 7, v8")
    E("v_lshl_add_u32 v4, v9, 4, v8")
    E("v_add_u32 v4, s31, v4")
    E("v_xor_b32 v5, 64, v4")
    E("s_lshl_b32 s48, s29, 2")
    E("s_add_u32 s48, s48, s28")
    E("s_lshl_b32 s57, s48, 5")
    E("s_mul_i32 s48, s48, 28672")
    E(f"s_add_u32 s48, s48, {Z1F}")
    E("s_mul_i32 s49, s30, 7")
    E("s_add_u32 s42, s49, s44")
    E("s_lshl_b32 s42, s42, 9")
    E("s_add_u32 s50, s42, s48")
    E("s_add_u32 s51, s50, 1024")
    E("s_add_u32 s52, s50, 2048")
    E("s_mul_i32 s42, s44, 4088")
    E("s_add_u32 s53, s50, 3072")
    E("s_sub_u32 s53, s53, s42")
    E("s_mul_i32 s42, s44, 504")
    E("s_add_u32 s56, s53, s42")
    E("s_lshl_b32 s48, s29, 2")
    E("s_add_u32 s48, s48, s28")
    E("s_mul_i32 s48, s48, 14336")
    E("s_lshl_b32 s49, s30, 7")
    E("s_add_u32 s54, s48, s49")
    E("s_mul_i32 s48, s28, 7168")
    E("s_min_u32 s49, s30, 6")
    E("s_mul_i32 s49, s49, 114688")
    E("s_add_u32 s49, s49, s48")
    for aa in range(4): E(f"s_add_u32 s{88+aa}, s49, {WOF + aa*28672}")
    E("s_lshl_b32 s49, s29, 2")
    for b in range(4):
        E(f"s_xor_b32 s42, s28, {b}")
        E("s_add_u32 s42, s42, s49")
        E("s_mul_i32 s42, s42, 28672")
        E("s_add_u32 s42, s42, s48")
        E(f"s_add_u32 s{92+b}, s42, {HF}")
    QL = [172, 176, 180, 244, 248, 252] + list(range(184, 228, 4)) + list(range(128, 156, 4)) + list(range(228, 244, 4))
    NW15 = int(os.environ.get("NW15", "0")); NWR1 = int(os.environ.get("NWR1", "8")); NWR2 = int(os.environ.get("NWR2", "8"))
    W0 = {}; worder = [(k, aa) for k in range(4) for aa in range(4)]
    for k in range(4, 7):
        for aa in range(4): W0[(k, aa)] = QL.pop()
    def wof(r):
        k, aa = worder.pop(0); W0[(k, aa)] = r
        E(f"buffer_load_dwordx4 v[{r}:{r+3}], v{6 + (k >> 2)}, s[{SWS}:{SWS+3}], s{88+aa} offen offset:{(k & 3)*1024}")
        V.issue(("wo", k))
    E("v_add_u32 v11, 0x400000, v6")
    E("v_and_b32 v12, 15, v1")
    E("v_lshlrev_b32 v12, 1, v12")
    def wread(kp, h):
        for b in range(4):
            r = WF + 16 * h + 4 * b
            E(f"ds_read_b128 v[{r}:{r+3}], v{4+h} offset:{(kp & 1) * 8192 + b * 2048}")
    E("s_bfe_u32 s42, s2, 0x50003")
    E("s_lshl_b32 s42, s42, 2")
    E("s_add_u32 s42, s42, s28")
    code_touch(E, "g", "s42", 2, 128)
    V.wait(("W", 0))
    stamp(E, 1)
    wread(0, 0)
    Z1R = ZB + 28 * 1
    for ks in range(16):
        kp, h = ks >> 1, ks & 1
        E("s_waitcnt lgkmcnt(0)")
        if h == 0: wread(kp, 1)
        if ks + ZD < 16: zbase(ks + ZD)
        if ks in (4, 8, 12): stamp(E, 1 + ks // 4)
        if ks == int(os.environ.get("PRIOKS", "0")): E("s_setprio 1")
        for a in range(7):
            V.wait(("Z", ks, a))
            z = ZB + 28 * (ks % 3) + 4 * a
            for b in ((1, 3) if (ks == 15 and LASTR) else range(4)):
                c = ACC + 16 * a + 4 * b; w = WF + 16 * h + 4 * b
                src = "0" if ks == 0 else f"v[{c}:{c+3}]"
                E(f"v_mfma_f32_16x16x32_bf16 v[{c}:{c+3}], v[{z}:{z+3}], v[{w}:{w+3}], {src}")
            if ks + ZD < 16: zld(ks + ZD, a)
            if h == 0 and kp + 2 < 8:
                if a == 1: E("s_waitcnt lgkmcnt(0)")
                if 2 <= a <= 5:
                    wdma(kp + 2, 2 * (a - 2)); wdma(kp + 2, 2 * (a - 2) + 1)
            if h == 1 and a == 3 and kp + 1 < 8:
                V.wait(("W", kp + 1))
                wread(kp + 1, 0)
            if ks == 16 - ZD:
                if a == 0:
                    E("v_lshlrev_b32 v14, 3, v1")
                    E("v_add_u32 v14, 0x400000, v14")
                    E("v_and_b32 v15, 15, v1")
                    E("v_mul_u32_u24 v15, 896, v15")
                    E("v_lshl_add_u32 v15, v10, 4, v15")
                if a in (1, 3):
                    E("s_lshl_b32 s42, s28, 11")
                    E(f"s_add_u32 m0, s42, {73728 + (a >> 1) * 1024}")
                    E(f"s_add_u32 s42, s54, {64 * (a >> 1)}")
                    E(f"buffer_load_dwordx4 v15, s[{SX}:{SX+3}], s42 offen lds")
                    V.issue("x")
            if ks == 15 and a >= 7 - NW15: wof(QL.pop(0))
            if ks == 14:
                if a < 6 and a % 2 == 0:
                    E(f"buffer_load_dwordx4 v[{Z1R+2*a}:{Z1R+2*a+3}], v6, s[{SWS}:{SWS+3}], s{50+a//2} offen")
                    V.issue("z1")
                if a == 6:
                    E(f"buffer_load_dwordx2 v[{Z1R+2*a}:{Z1R+2*a+1}], v6, s[{SWS}:{SWS+3}], s53 offen")
                    V.issue("z1")
                if a == 1:
                    E(f"buffer_load_ushort v13, v12, s[{SB}:{SB+3}], s57 offen")
                    V.issue("z1")
    stamp(E, 5)
    E("v_add_u32 v8, s31, v6")
    E("v_xor_b32 v9, 0x4000, v8")
    E("v_xor_b32 v10, 0xC000, v8")
    for a in range(7):
        if LASTR:
            for b in (0, 2):
                c = ACC + 16 * a + 4 * b; w = WF + 16 + 4 * b; z = ZB + 4 * a
                E(f"v_mfma_f32_16x16x32_bf16 v[{c}:{c+3}], v[{z}:{z+3}], v[{w}:{w+3}], v[{c}:{c+3}]")
        for i, b in enumerate((1, 3)):
            c = ACC + 16 * a + 4 * b
            E(f"ds_write_b128 v8, v[{c}:{c+3}] offset:{(2*a+i)*1024}")
    E("s_lshl_b32 s43, s29, 10")
    E("s_lshl_b32 s42, s30, 7")
    E("s_add_u32 s42, s42, s43")
    E("s_lshl_b32 s48, s28, 2")
    E("s_add_u32 s42, s42, s48")
    E(f"s_add_u32 s42, s42, {FLG}")
    for i in range(NWR1): wof(QL.pop(0))
    E("s_waitcnt lgkmcnt(0)")
    E("s_barrier")
    T = ZB + 56
    for a in range(7):
        for i in range(2):
            r = ACC + 16 * a + 4 + 8 * i
            E(f"ds_read_b128 v[{r}:{r+3}], v9 offset:{(2*a+i)*1024}")
    for a in range(7):
        E(f"s_waitcnt lgkmcnt({12 - 2*a})")
        for i, b in enumerate((0, 2)):
            c = ACC + 16 * a + 4 * b; r = c + 4
            E(f"v_pk_add_f32 v[{c}:{c+1}], v[{c}:{c+1}], v[{r}:{r+1}]")
            E(f"v_pk_add_f32 v[{c+2}:{c+3}], v[{c+2}:{c+3}], v[{r+2}:{r+3}]")
    for a in range(7):
        c = ACC + 16 * a + 8
        E(f"ds_write_b128 v9, v[{c}:{c+3}] offset:{a*1024}")
    for i in range(NWR2): wof(QL.pop(0))
    V.wait("z1")
    E("v_lshlrev_b32 v13, 16, v13")
    for i in range(14):
        E(f"v_lshlrev_b32 v{ZB+2*i}, 16, v{Z1R+i}")
        E(f"v_and_b32 v{ZB+2*i+1}, 0xffff0000, v{Z1R+i}")
    E("s_waitcnt lgkmcnt(0)")
    E("s_barrier")
    for a in range(7):
        r = ACC + 16 * a + 12
        E(f"ds_read_b128 v[{r}:{r+3}], v10 offset:{a*1024}")
    stamp(E, 6)
    for a in range(7):
        E(f"s_waitcnt lgkmcnt({6 - a})")
        c = ACC + 16 * a; r = c + 12; t = c + 4
        E(f"v_pk_add_f32 v[{c}:{c+1}], v[{c}:{c+1}], v[{r}:{r+1}]")
        E(f"v_pk_add_f32 v[{c+2}:{c+3}], v[{c+2}:{c+3}], v[{r+2}:{r+3}]")
        E(f"v_cvt_pk_bf16_f32 v{t}, v{c}, v{c+1}")
        E(f"v_cvt_pk_bf16_f32 v{t+1}, v{c+2}, v{c+3}")
        E(f"v_lshlrev_b32 v{c}, 16, v{t}")
        E(f"v_and_b32 v{c+1}, 0xffff0000, v{t}")
        E(f"v_lshlrev_b32 v{c+2}, 16, v{t+1}")
        E(f"v_and_b32 v{c+3}, 0xffff0000, v{t+1}")
        for k in (0, 2): E(f"v_pk_add_f32 v[{c+k}:{c+k+1}], v[{c+k}:{c+k+1}], v[12:13] op_sel:[0,1] op_sel_hi:[1,1]")
        E(f"v_cvt_pk_bf16_f32 v{t}, v{c}, v{c+1}")
        E(f"v_cvt_pk_bf16_f32 v{t+1}, v{c+2}, v{c+3}")
        E(f"v_lshlrev_b32 v{c}, 16, v{t}")
        E(f"v_and_b32 v{c+1}, 0xffff0000, v{t}")
        E(f"v_lshlrev_b32 v{c+2}, 16, v{t+1}")
        E(f"v_and_b32 v{c+3}, 0xffff0000, v{t+1}")
        z = ZB + 4 * a
        E(f"v_pk_mul_f32 v[{c}:{c+1}], v[{c}:{c+1}], v[{z}:{z+1}]")
        E(f"v_pk_mul_f32 v[{c+2}:{c+3}], v[{c+2}:{c+3}], v[{z+2}:{z+3}]")
        o = c + 8 if a % 2 == 0 else c - 16 + 10
        E(f"v_cvt_pk_bf16_f32 v{o}, v{c}, v{c+1}")
        E(f"v_cvt_pk_bf16_f32 v{o+1}, v{c+2}, v{c+3}")
        if a == 6:
            E(f"buffer_store_dwordx2 v[{o}:{o+1}], v14, s[{SWS}:{SWS+3}], s56 offen sc1"); V.issue("hs")
        elif a % 2:
            E(f"buffer_store_dwordx4 v[{o-2}:{o+1}], v11, s[{SWS}:{SWS+3}], s{50+a//2} offen sc1"); V.issue("hs")
    stamp(E, 7)
    E("s_cmp_lg_u32 s30, 7")
    E("s_cbranch_scc1 K2_P3")
    E("s_waitcnt vmcnt(0)")
    flag_store(E, "s42", SWS)
    reread(E, SWS)
    for i in range(8, 12): stamp(E, i)
    stamp_flush(E, 12, SWS, 1)
    E("s_endpgm")
    E.label("K2_P3")
    phase3(E, V, W0, SWS, SO, lambda: [wof(QL.pop(0)) for i in range(len(QL))])

def poll(E, lab, vd, va, so, SWS, pre=False, slp=2):
    E("s_mov_b32 s46, 20000")
    if pre: E(f"s_branch {lab}_C")
    E.label(lab)
    E(f"buffer_load_dword v{vd}, v{va}, s[{SWS}:{SWS+3}], {so} offen sc1")
    E("s_waitcnt vmcnt(0)")
    E.label(lab + "_C")
    E(f"v_cmp_eq_u32 vcc, 0, v{vd}")
    E(f"s_cbranch_vccz {lab}_D")
    E(f"s_sleep {slp}")
    E("s_sub_u32 s46, s46, 1")
    E(f"s_cbranch_scc0 {lab}")
    E.label(lab + "_D")

def reread(E, SWS):
    if not RERD: return 0
    for p in range(3): E(f"buffer_load_dwordx4 v[{80+4*p}:{83+4*p}], v11, s[{SWS}:{SWS+3}], s{50+p} offen")
    E(f"buffer_load_dwordx2 v[92:93], v14, s[{SWS}:{SWS+3}], s56 offen")
    return 4

def flag_store(E, so, SWS, vt=(3, 4)):
    E(f"v_mov_b32 v{vt[0]}, 0")
    E(f"v_mov_b32 v{vt[1]}, 1")
    E("s_mov_b64 exec, 1")
    E(f"buffer_store_dword v{vt[1]}, v{vt[0]}, s[{SWS}:{SWS+3}], {so} offen sc1")
    E("s_mov_b64 exec, -1")

def phase3(E, V, W0, SWS, SO, rest):
    HQ = {(k, b): 80 + 16 * k + 4 * b for k in range(3) for b in range(4)}
    for b in range(4):
        HQ[(3, b)] = 156 + 4 * b
        for k in range(4, 7): HQ[(k, b)] = W0[(k, b)]
    E("s_lshl_b32 s44, s28, 11")
    E("v_mov_b32 v2, v15")
    E("s_lshl_b32 s43, s29, 10")
    E(f"s_add_u32 s43, s43, {FLG}")
    E("v_and_b32 v5, 3, v1")
    E("v_lshlrev_b32 v5, 2, v5")
    E("v_bfe_u32 v9, v1, 2, 3")
    E("v_lshl_add_u32 v5, v9, 7, v5")
    E("s_cmp_lt_u32 s30, 6")
    E("s_cselect_b32 s48, 1, 0")
    E("v_and_b32 v9, 15, v1")
    E("v_lshrrev_b32 v9, s48, v9")
    E("v_lshlrev_b32 v9, 7, v9")
    E("s_lshr_b32 s49, s44, s48")
    E("s_lshl_b32 s45, s30, 12")
    E("s_add_u32 s45, s45, s49")
    E("s_lshr_b32 s49, s29, 3")
    E("s_lshl_b32 s49, s49, 2")
    E("s_add_u32 s45, s45, s49")
    E(f"s_add_u32 s45, s45, {FLG + 256*128}")
    E(f"buffer_load_dword v10, v9, s[{SWS}:{SWS+3}], s45 offen sc1")
    V.issue("py")
    E("s_barrier")
    E("v_lshrrev_b32 v12, 3, v1")
    E("v_lshlrev_b32 v12, 12, v12")
    E("v_and_b32 v13, 7, v1")
    E("v_lshl_add_u32 v12, v13, 4, v12")
    E("s_lshl_b32 s47, s30, 2")
    E("s_add_u32 s47, s47, s28")
    E("s_lshl_b32 s47, s47, 16")
    E("s_lshl_b32 s49, s29, 7")
    E("s_add_u32 s47, s47, s49")
    E(f"s_add_u32 s47, s47, {YT}")
    E("s_add_u32 s49, s47, 32768")
    V.wait("hs")
    flag_store(E, "s42", SWS)
    V.issue("fl")
    for i in range(reread(E, SWS)): V.issue("rr")
    stamp(E, 8)
    V.wait("py")
    E("v_cmp_eq_u32 vcc, 0, v10")
    E("s_mov_b64 s[40:41], vcc")
    E("s_cbranch_vccnz K2G_NOY")
    E(f"s_add_u32 m0, s44, 65536")
    E(f"buffer_load_dwordx4 v12, s[{SWS}:{SWS+3}], s47 offen sc1 lds")
    E(f"s_add_u32 m0, s44, {65536 + 1024}")
    E(f"buffer_load_dwordx4 v12, s[{SWS}:{SWS+3}], s49 offen sc1 lds")
    E.label("K2G_NOY")
    rest()
    WR = {k: [W0[(k % 4 if k > 3 else k, aa)] for aa in range(4)] for k in range(7)}
    for k in range(4, 7):
        for aa in range(4):
            E(f"s_add_u32 m0, s31, {((k-4)*4+aa)*1024}")
            E(f"s_add_u32 s48, s{88+aa}, {k*1024}")
            E(f"buffer_load_dwordx4 v6, s[{SWS}:{SWS+3}], s48 offen lds")
    E("v_lshlrev_b32 v4, 3, v1")
    E("s_waitcnt lgkmcnt(0)")
    E("s_cmp_lg_u32 s28, 0")
    E("s_cbranch_scc1 K2G_PH_D")
    poll(E, "K2G_PH", 10, 5, "s43", SWS, slp=1)
    E("s_waitcnt vmcnt(0)")
    E("s_barrier")
    stamp(E, 9)
    V.q = []; V.done = 0
    def hld(k, b):
        if k == 6 and b == 1:
            E(f"buffer_load_dword v10, v9, s[{SWS}:{SWS+3}], s45 offen sc1")
            V.issue("py2")
        r = HQ[(k, b)]
        if k == 3:
            for e in range(2):
                E(f"buffer_load_dwordx2 v[{r+2*e}:{r+2*e+1}], v4, s[{SWS}:{SWS+3}], s{92+b} offen offset:{3072 + 512*e}{HSC}")
                V.issue((k, b))
            return
        E(f"buffer_load_dwordx4 v[{r}:{r+3}], v{6 + (k >> 2)}, s[{SWS}:{SWS+3}], s{92+b} offen offset:{(k & 3)*1024}{HSC}")
        V.issue((k, b))
    HPRE = int(os.environ.get("HPRE", "2"))
    for k in range(HPRE):
        for b in range(4): hld(k, b)
    if DBG3: stamp(E, 2)
    def wrd(k):
        for aa in range(4):
            r = WR[k][aa]
            E(f"ds_read_b128 v[{r}:{r+3}], v8 offset:{((k-4)*4+aa)*1024}")
    for k in range(1, 4): E(f"v_xor_b32 v{12+k}, {k << 14}, v8")
    E("v_lshrrev_b32 v3, 4, v1")
    E("v_bfe_u32 v11, v1, 2, 2")
    E("v_lshl_add_u32 v11, v3, 3, v11")
    E("v_lshlrev_b32 v11, 7, v11")
    E("v_and_b32 v3, 3, v1")
    E("v_lshl_add_u32 v11, v3, 3, v11")
    E("s_lshl_b32 s48, s28, 5")
    E("s_add_u32 s48, s48, 65536")
    E("v_add_u32 v11, s48, v11")
    E("s_lshl_b32 s48, s28, 11")
    E("v_add_u32 v3, s48, v6")
    E("v_add_u32 v3, 73728, v3")
    for k in range(7):
        if k >= 4: E(f"s_waitcnt lgkmcnt({(6 - k) * 4})")
        if k == 6:
            V.wait("py2")
            E("s_cmp_eq_u64 s[40:41], 0")
            E("s_cbranch_scc1 K2G_NOY2")
            E("v_cmp_eq_u32 vcc, 0, v10")
            E("s_mov_b64 s[40:41], vcc")
            E("s_cbranch_vccnz K2G_NOY2")
            E(f"s_add_u32 m0, s44, 65536")
            E(f"buffer_load_dwordx4 v12, s[{SWS}:{SWS+3}], s47 offen sc1 lds")
            E(f"s_add_u32 m0, s44, {65536 + 1024}")
            E(f"buffer_load_dwordx4 v12, s[{SWS}:{SWS+3}], s49 offen sc1 lds")
            E("s_waitcnt vmcnt(2)")
            E.label("K2G_NOY2")
        for b in ((1, 2, 3, 0) if k == 6 else range(4)):
            V.wait((k, b))
            if DBG3 and b == 0 and k in (0, 4): stamp(E, 3 + k // 4)
            for aa in range(4):
                c = 16 + 16 * b + 4 * aa; a = WR[k][aa]; bb = HQ[(k, b)]
                E(f"v_mfma_f32_16x16x32_bf16 v[{c}:{c+3}], v[{a}:{a+3}], v[{bb}:{bb+3}], {'0' if k == 0 else f'v[{c}:{c+3}]'}")
            if k + HPRE < 7: hld(k + HPRE, (b + 1) % 4 if k + HPRE == 6 else b)
            if k == 6 and b != 1:
                pb = (b - 1) % 4
                for aa in range(4):
                    c = 16 + 16 * pb + 4 * aa
                    E(f"ds_write_b128 v8, v[{c}:{c+3}] offset:{((pb-1)*4+aa)*1024}")
        if k < 3: wrd(k + 4)
    stamp(E, 10)
    E("s_cmp_eq_u64 s[40:41], 0")
    E("s_cbranch_scc1 K2G_YOK")
    poll(E, "K2G_PY", 10, 9, "s45", SWS)
    E(f"s_add_u32 m0, s44, 65536")
    E(f"buffer_load_dwordx4 v12, s[{SWS}:{SWS+3}], s47 offen sc1 lds")
    E(f"s_add_u32 m0, s44, {65536 + 1024}")
    E(f"buffer_load_dwordx4 v12, s[{SWS}:{SWS+3}], s49 offen sc1 lds")
    E.label("K2G_YOK")
    X, Y, T1, T2, OUT, PR = 128, 136, 144, 160, 176, 80
    for hh in range(2): E(f"ds_read_b128 v[{X+4*hh}:{X+4*hh+3}], v3 offset:{1024*hh}")
    E("s_waitcnt vmcnt(0) lgkmcnt(0)")
    if DBG3: stamp(E, 5)
    E("s_barrier")
    if DBG3: stamp(E, 1)
    for hh in range(2):
        for h2 in range(2):
            E(f"ds_read_b64_tr_b16 v[{Y+4*hh+2*h2}:{Y+1+4*hh+2*h2}], v11 offset:{(32*hh+4*h2)*128}")
    for aa in range(4):
        for k in range(1, 4):
            r = PR + 16 * (k - 1) + 4 * aa
            E(f"ds_read_b128 v[{r}:{r+3}], v{12+k} offset:{((k-1)*4+aa)*1024}")
    for i in range(8):
        E(f"v_lshlrev_b32 v{T1+2*i}, 16, v{X+i}")
        E(f"v_and_b32 v{T1+2*i+1}, 0xffff0000, v{X+i}")
    E("s_waitcnt lgkmcnt(12)")
    for i in range(8):
        E(f"v_lshlrev_b32 v{T2+2*i}, 16, v{Y+i}")
        E(f"v_and_b32 v{T2+2*i+1}, 0xffff0000, v{Y+i}")
    for i in range(8): E(f"v_pk_add_f32 v[{T1+2*i}:{T1+2*i+1}], v[{T1+2*i}:{T1+2*i+1}], v[{T2+2*i}:{T2+2*i+1}]")
    for i in range(8): E(f"v_cvt_pk_bf16_f32 v{X+i}, v{T1+2*i}, v{T1+2*i+1}")
    for i in range(8):
        E(f"v_lshlrev_b32 v{T1+2*i}, 16, v{X+i}")
        E(f"v_and_b32 v{T1+2*i+1}, 0xffff0000, v{X+i}")
    for aa in range(4):
        E(f"s_waitcnt lgkmcnt({9 - 3*aa})")
        for p in (0, 2):
            c = 16 + 4 * aa + p; r = PR + 4 * aa + p
            E(f"v_pk_add_f32 v[{c}:{c+1}], v[{c}:{c+1}], v[{r}:{r+1}]")
            E(f"v_pk_add_f32 v[{r+16}:{r+17}], v[{r+16}:{r+17}], v[{r+32}:{r+33}]")
        for p in (0, 2):
            c = 16 + 4 * aa + p; r = PR + 4 * aa + p
            E(f"v_pk_add_f32 v[{c}:{c+1}], v[{c}:{c+1}], v[{r+16}:{r+17}]")
        for p in (0, 2):
            c = 16 + 4 * aa + p; r = PR + 4 * aa + p; t = T1 + 4 * aa + p
            E(f"v_cvt_pk_bf16_f32 v{r}, v{c}, v{c+1}")
            E(f"v_lshlrev_b32 v{c}, 16, v{r}")
            E(f"v_and_b32 v{c+1}, 0xffff0000, v{r}")
            E(f"v_pk_add_f32 v[{c}:{c+1}], v[{c}:{c+1}], v[{t}:{t+1}]")
            E(f"v_cvt_pk_bf16_f32 v{OUT + 2*aa + p//2}, v{c}, v{c+1}")
        if aa & 1:
            hh = aa >> 1
            E(f"buffer_store_dwordx4 v[{OUT+4*hh}:{OUT+4*hh+3}], v2, s[{SO}:{SO+3}], s54 offen offset:{64*hh}")
    stamp(E, 11)
    stamp_flush(E, 12, SWS, 1)
    E("s_endpgm")

TABW = 57 * 272
URB = 4 * TABW
KPB = URB + 4608 + 16
KXB = 70752
KX1 = 4160
UR2 = 40960
LOG2E = 1.4426950408889634

def kgen(E, P, swq, sgb, kpoff, stamps=0, pre_write=None):
    import struct
    def exp_acc(dst, src):
        hi32 = struct.unpack("<f", struct.pack("<f", LOG2E))[0]; lo = LOG2E - hi32
        E(f"v_mul_f32 v12, {f32hex(hi32)}, {src}")
        E(f"v_mov_b32 v14, {f32hex(hi32)}")
        E(f"v_fma_f32 v13, {src}, v14, -v12")
        E(f"v_fmac_f32 v13, {f32hex(lo)}, {src}")
        E(f"v_exp_f32 v12, v12")
        E(f"v_mul_f32 v13, {f32hex(math.log(2.0))}, v13")
        E(f"v_fma_f32 {dst}, v12, v13, v12")
    E("v_lshlrev_b32 v5, 16, v5")
    exp_acc("v9", "v9"); bf16r(E, "v9", "v9")
    exp_acc("v5", "v5"); bf16r(E, "v5", "v5")
    if stamps: stamp(E, stamps)
    for r in (6, 7, 8): E(f"v_lshlrev_b32 v{r}, 16, v{r}")
    E("v_mul_f32 v5, -v5, v9")
    E("v_mul_f32 v6, v6, v9")
    T, F, H, W = 32, 48, 66, 84
    TH, FH, HH, WH, GH = 96, 104, 120, 138, 140
    E(f"v_mul_f32 v{H}, v7, v9")
    E(f"v_mul_f32 v{H+1}, v8, v9")
    E(f"v_mul_f32 v{H}, {f32hex(64.0)}, v{H}")
    E(f"v_mul_f32 v{H+1}, {f32hex(64.0)}, v{H+1}")
    for m, dst, t in ((1, T + 2, 27), (8, F + 2, 28), (128, W, 29)):
        E(f"v_mul_f32 v{t}, {f32hex(m * LOG2E)}, v5")
        E(f"v_mul_f32 v{dst+1}, {f32hex(m / (2 * math.pi))}, v6")
        E(f"v_exp_f32 v{t}, v{t}")
        E(f"v_cos_f32 v{dst}, v{dst+1}")
        E(f"v_sin_f32 v{dst+1}, v{dst+1}")
    for m, dst, t in ((1, T + 2, 27), (8, F + 2, 28), (128, W, 29)):
        E(f"v_mul_f32 v{dst}, v{dst}, v{t}")
        E(f"v_mul_f32 v{dst+1}, v{dst+1}, v{t}")
    def cmul_batch(lst):
        for z, x, y in lst:
            E(f"v_mul_f32 v{z}, v{x}, v{y}")
            E(f"v_mul_f32 v{z+1}, v{x+1}, v{y}")
        for z, x, y in lst:
            E(f"v_fma_f32 v{z}, -v{x+1}, v{y+1}, v{z}")
            E(f"v_fmac_f32 v{z+1}, v{x}, v{y+1}")
    def hmul_batch(lst, rows):
        for z, x, y in lst: E(f"v_pk_mul_f16 v{z}, v{x}, v{y} op_sel:[0,0] op_sel_hi:[1,0]")
        for (z, x, y), r in zip(lst, rows):
            E(f"v_pk_fma_f16 v{z}, v{x}, v{y}, v{z} op_sel:[1,1,0] op_sel_hi:[0,1,1] neg_lo:[1,0,0]")
        for (z, x, y), r in zip(lst, rows): E(f"ds_write_b32 v11, v{z} offset:{r * 272}")
    t = lambda k: T + 2 * k
    f = lambda k: F + 2 * k
    h = lambda k: H + 2 * k
    w = lambda i: W + 2 * i
    E(f"s_mul_i32 s48, {swq}, {TABW}")
    if sgb: E(f"s_add_u32 s48, s48, {sgb}")
    E("v_lshlrev_b32 v11, 2, v1")
    E("v_add_u32 v11, s48, v11")
    def put(row, dst, src, neg):
        E(f"v_cvt_pk_f16_f32 v{dst}, v{src}, {'-' if neg else ''}v{src+1}")
        if row is not None: E(f"ds_write_b32 v11, v{dst} offset:{row * 272}")
    hrow = [0, 8, 16, 20, 24, 26, 28, 30] + [32 + k for k in range(8)]
    def sq_batch(lst):
        for z, x in lst:
            E(f"v_mul_f32 v{z}, v{x}, v{x}")
            E(f"v_add_f32 v{z+1}, v{x}, v{x}")
        for z, x in lst:
            E(f"v_fma_f32 v{z}, -v{x+1}, v{x+1}, v{z}")
            E(f"v_mul_f32 v{z+1}, v{z+1}, v{x+1}")
    def hm(lst):
        for z, x, y, r in lst: E(f"v_pk_mul_f16 v{z}, v{x}, v{y} op_sel:[0,0] op_sel_hi:[1,0]")
        for z, x, y, r in lst: E(f"v_pk_fma_f16 v{z}, v{x}, v{y}, v{z} op_sel:[1,1,0] op_sel_hi:[0,1,1] neg_lo:[1,0,0]")
        for z, x, y, r in lst:
            if r is not None: E(f"ds_write_b32 v11, v{z} offset:{r * 272}")
    WQ = 180
    sq_batch([(t(2), t(1)), (f(2), f(1)), (w(1), w(0))])
    if pre_write: pre_write()
    E("v_mov_b32 v30, 0x3c00")
    E(f"ds_write_b32 v11, v30 offset:{41 * 272}")
    put(0, HH, h(0), True); put(42, FH + 1, f(1), False); put(None, TH + 1, t(1), True); put(None, WQ, w(0), True)
    sq_batch([(t(4), t(2)), (f(4), f(2)), (w(2), w(1))])
    put(43, FH + 2, f(2), False); put(None, TH + 2, t(2), True); put(None, WQ + 1, w(1), True)
    sq_batch([(f(8), f(4)), (w(3), w(2))])
    put(45, FH + 4, f(4), False); put(None, TH + 4, t(4), True); put(None, WQ + 2, w(2), True)
    hm([(HH + 1, HH, WQ, hrow[1]), (HH + 2, HH, WQ + 1, hrow[2]), (TH + 3, TH + 2, TH + 1, None), (FH + 3, FH + 2, FH + 1, 44),
        (HH + 4, HH, WQ + 2, hrow[4]), (TH + 5, TH + 4, TH + 1, None), (TH + 6, TH + 4, TH + 2, None),
        (FH + 5, FH + 4, FH + 1, 46), (FH + 6, FH + 4, FH + 2, 47)])
    put(49, FH + 8, f(8), False); put(None, WH, w(3), True)
    hm([(HH + 3, HH + 1, WQ + 1, hrow[3]), (HH + 5, HH + 1, WQ + 2, hrow[5]), (HH + 6, HH + 2, WQ + 2, hrow[6]),
        (TH + 7, TH + 4, TH + 3, None), (FH + 7, FH + 4, FH + 3, 48)] +
       [(HH + 8 + k, HH + k, WH, hrow[8 + k]) for k in (0, 1, 2, 4)] + [(FH + 8 + k, FH + 8, FH + k, 49 + k) for k in range(1, 7)])
    if stamps > 2: stamp(E, stamps + 2)
    hm([(HH + 7, HH + 3, WQ + 2, hrow[7]), (FH + 15, FH + 8, FH + 7, 56)] + [(HH + 8 + k, HH + k, WH, hrow[8 + k]) for k in (3, 5, 6)])
    rows = [(8 * hh + e, HH + hh, TH + e) for hh in range(2) for e in range(1, 8)]
    rows += [(16 + 4 * hh + e, HH + 2 + hh, TH + 2 * e) for hh in range(2) for e in range(1, 4)]
    rows += [(24 + 2 * hh + 1, HH + 4 + hh, TH + 4) for hh in range(4)]
    rows += [(40, HH + 8, WH), (39, HH + 7, WH)]
    for lo_, hi_ in ((0, 13), (13, 26)):
        hmul_batch([(GH + i, x, y) for i, (r, x, y) in list(enumerate(rows))[lo_:hi_]], [r for r, x, y in rows[lo_:hi_]])
    if stamps: stamp(E, stamps + 1)
    E("v_mul_u32_u24 v12, 272, v25")
    E("v_lshl_add_u32 v12, v26, 4, v12")
    E("v_add_u32 v12, s48, v12")
    FRG = 32
    for q in range(4):
        E(f"ds_read_b128 v[{FRG+16*q}:{FRG+16*q+3}], v12 offset:{41*272 + 64*q}")
        for m in range(3):
            if q == 3 and m == 2: E("s_waitcnt lgkmcnt(14)")
            E(f"ds_read_b128 v[{FRG+16*q+4+4*m}:{FRG+16*q+7+4*m}], v12 offset:{16*m*272 + 64*q}")
    E("v_lshlrev_b32 v13, 4, v1")
    E("v_add_u32 v15, s48, v13")
    E(f"s_lshl_b32 s48, {swq}, 10")
    if sgb: E(f"s_add_u32 s48, s48, {sgb}")
    E("v_add_u32 v13, s48, v13")
    E(f"v_mov_b32 v14, {kpoff}")
    E("v_lshl_add_u32 v14, v25, 4, v14")
    if sgb: E(f"v_add_u32 v14, {sgb}, v14")
    for q in range(4):
        for m in range(3):
            E(f"s_waitcnt lgkmcnt({14 - 4*q - m})")
            c = 160 + 4 * m
            E(f"v_mfma_f32_16x16x32_f16 v[{c}:{c+3}], v[{FRG+16*q+4+4*m}:{FRG+16*q+7+4*m}], v[{FRG+16*q}:{FRG+16*q+3}], {'0' if q == 0 else f'v[{c}:{c+3}]'}")
    for m in range(3): E(f"ds_write_b128 v15, v[{160+4*m}:{163+4*m}] offset:{1024*m}")
    E("s_waitcnt lgkmcnt(0)")
    E("s_barrier")
    if stamps > 2: stamp(E, stamps + 3)
    E(f"s_cmp_eq_u32 {swq}, 3")
    E(f"s_cbranch_scc1 {P}_SKIPM")
    for ww in range(4): E(f"ds_read_b128 v[{160+4*ww}:{163+4*ww}], v13 offset:{ww*TABW}")
    E("s_waitcnt lgkmcnt(0)")
    for k in range(4): E(f"v_add_f32 v{160+k}, v{160+k}, v{164+k}")
    for k in range(4): E(f"v_add_f32 v{168+k}, v{168+k}, v{172+k}")
    for k in range(4): E(f"v_add_f32 v{160+k}, v{160+k}, v{168+k}")
    for k in range(4): E(f"v_mul_f32 v{160+k}, {f32hex(2.0 / 64)}, v{160+k}")
    E("v_cvt_pk_bf16_f32 v164, v160, v161")
    E("v_cvt_pk_bf16_f32 v165, v162, v163")
    E(f"s_cmp_eq_u32 {swq}, 1")
    E(f"s_cbranch_scc1 {P}_M1")
    E(f"s_cmp_eq_u32 {swq}, 2")
    E(f"s_cbranch_scc1 {P}_M2")
    E("v_lshrrev_b32 v12, 1, v26")
    E("v_lshl_add_u32 v14, v12, 8, v14")
    E("v_and_b32 v12, 1, v26")
    E("v_lshl_add_u32 v14, v12, 3, v14")
    E("ds_write_b64 v14, v[164:165]")
    E(f"s_branch {P}_SKIPM")
    E.label(f"{P}_M1")
    E("v_lshl_add_u32 v12, v26, 8, v14")
    E("v_lshl_add_u32 v13, v26, 9, v14")
    E("s_mov_b32 exec_hi, 0")
    E("ds_write_b16 v12, v164 offset:512")
    E("ds_write_b16_d16_hi v12, v164 offset:516")
    E("ds_write_b16 v12, v165 offset:520")
    E("ds_write_b16_d16_hi v12, v165 offset:524")
    E("s_mov_b32 exec_hi, -1")
    E("s_mov_b32 exec_lo, 0")
    E("ds_write_b16 v13, v164")
    E("ds_write_b16_d16_hi v13, v164 offset:8")
    E("ds_write_b16 v13, v165 offset:256")
    E("ds_write_b16_d16_hi v13, v165 offset:264")
    E("s_mov_b64 exec, -1")
    E(f"s_branch {P}_SKIPM")
    E.label(f"{P}_M2")
    E("v_lshl_add_u32 v12, v26, 10, v14")
    E("s_mov_b32 exec_hi, 0")
    E("ds_write_b16 v12, v164 offset:2048")
    E("ds_write_b16_d16_hi v12, v164 offset:2304")
    E("ds_write_b16 v12, v165 offset:2560")
    E("ds_write_b16_d16_hi v12, v165 offset:2816")
    E("s_mov_b32 exec_hi, 1")
    E("s_mov_b32 exec_lo, 0")
    E("ds_write_b16 v12, v164 offset:2046")
    E("s_mov_b64 exec, -1")
    E.label(f"{P}_SKIPM")
    if stamps > 2: stamp(E, stamps + 4)
    E("s_waitcnt lgkmcnt(0)")
    E("s_barrier")

def conv(E):
    SWS, SLA, SAI, SCR, SCI, SDT, SDS = 12, 20, 24, 32, 36, 40, 44
    load_srds(E, [("ws", SWS), ("lar", SLA), ("aim", SAI), ("cre", SCR), ("cim", SCI), ("ldt", SDT), ("dsk", SDS)])
    stamp(E, 0)
    E("s_sub_u32 s29, s2, 256")
    E("s_mov_b32 s52, 0")
    E("s_add_u32 s48, s29, 192")
    E("s_lshl_b32 s29, s29, 1")
    E("s_cmp_ge_u32 s29, 384")
    E("s_cselect_b32 s29, s48, s29")
    E("s_cselect_b32 s52, 1, 0")
    E("v_lshlrev_b32 v2, 1, v0")
    E("s_lshl_b32 s30, s29, 9")
    E("s_lshl_b32 s31, s29, 1")
    E("v_mov_b32 v3, 0")
    E("v_lshlrev_b32 v4, 4, v1")
    E(f"s_mul_i32 s48, s29, {XS}")
    E("s_lshl_b32 s51, s28, 10")
    E("s_add_u32 s50, s48, s51")
    E(f"s_add_u32 s50, s50, {XNT}")
    E(f"s_add_u32 s51, s51, {URB}")
    E("s_mov_b32 m0, s51")
    E(f"s_mov_b32 s53, {URB}")
    E("s_waitcnt lgkmcnt(0)")
    E(f"buffer_load_ushort v9, v3, s[{SDT}:{SDT+3}], s31 offen")
    E(f"buffer_load_ushort v5, v2, s[{SLA}:{SLA+3}], s30 offen")
    E(f"buffer_load_ushort v6, v2, s[{SAI}:{SAI+3}], s30 offen")
    E(f"buffer_load_ushort v7, v2, s[{SCR}:{SCR+3}], s30 offen")
    E(f"buffer_load_ushort v8, v2, s[{SCI}:{SCI+3}], s30 offen")
    E(f"buffer_load_ushort v10, v3, s[{SDS}:{SDS+3}], s31 offen")
    E(f"buffer_load_ushort v205, v3, s[{SDS}:{SDS+3}], s31 offen offset:2")
    E(f"buffer_load_dwordx4 v4, s[{SWS}:{SWS+3}], s50 offen lds")
    E("s_lshl_b32 s48, s29, 11")
    E("s_lshl_b32 s49, s28, 10")
    E("s_add_u32 s48, s48, s49")
    E(f"s_add_u32 s48, s48, {KPG}")
    E(f"s_add_u32 s50, s50, {XS}")
    E("s_mov_b32 s54, s52")
    E(f"buffer_load_dwordx4 v[206:209], v4, s[{SWS}:{SWS+3}], s48 offen")
    E(f"buffer_load_dwordx4 v[210:213], v4, s[{SWS}:{SWS+3}], s50 offen")
    E("v_mov_b32 v12, 0"); E("v_mov_b32 v13, 0")
    E("v_lshlrev_b32 v11, 3, v1")
    E(f"v_add_u32 v14, {URB + 4096}, v11")
    E("ds_write_b64 v14, v[12:13]")
    E("v_and_b32 v11, 24, v11")
    E(f"v_add_u32 v11, {KXB}, v11")
    E("ds_write_b64 v11, v[12:13]")
    E(f"ds_write_b64 v11, v[12:13] offset:{KX1}")
    E(f"v_mov_b32 v11, {KPB - 8}")
    E("ds_write_b64 v11, v[12:13]")
    GA = 16
    E("v_lshlrev_b32 v11, 3, v0")
    for i in range(9):
        E(f"v_add_u32 v{GA+i}, {i-1}, v11")
    for i in range(9): E(f"v_cvt_f32_i32 v{GA+i}, v{GA+i}")
    for i in range(9): bf16r(E, f"v{GA+i}", f"v{GA+i}")
    for i in range(9): E(f"v_cvt_i32_f32 v{GA+i}, v{GA+i}")
    for i in range(9): E(f"v_min_i32 v{GA+i}, 2047, v{GA+i}")
    E(f"v_mov_b32 v11, {KPB}")
    for i in range(9): E(f"v_lshl_add_u32 v{GA+i}, v{GA+i}, 1, v11")
    E("v_and_b32 v25, 15, v1")
    E("v_lshrrev_b32 v26, 4, v1")
    E("s_waitcnt vmcnt(3)")
    E("v_lshlrev_b32 v205, 16, v205")
    E("v_lshlrev_b32 v9, 16, v9")
    E("v_lshlrev_b32 v10, 16, v10")
    kgen(E, "K2C", "s28", None, KPB, stamps=1)
    E.label("K2C_LOOP")
    stamp(E, 3)
    for i in range(9): E(f"ds_read_u16 v{40 + i}, v{GA + i}")
    E("v_lshlrev_b32 v11, 4, v0")
    E(f"v_add_u32 v11, {KXB + 32}, v11")
    E("s_lshl_b32 s48, s28, 7")
    E("v_lshl_add_u32 v12, v26, 3, v25")
    E("v_lshlrev_b32 v12, 1, v12")
    E("v_and_b32 v14, 1, v25")
    E("v_xor_b32 v14, 1, v14")
    E(f"v_mul_u32_u24 v14, {KX1 + 2}, v14")
    E(f"s_add_u32 s49, s48, {KXB + 2}")
    E("v_add3_u32 v12, v12, v14, s49")
    E("v_lshlrev_b32 v13, 4, v26")
    E("v_lshlrev_b32 v14, 5, v25")
    E("v_sub_u32 v13, v13, v14")
    E("s_add_u32 s49, s48, s53")
    E(f"s_add_u32 s49, s49, {4064 - 3584}")
    E("v_add_u32 v13, s49, v13")
    E("s_waitcnt lgkmcnt(0)")
    for i in range(4):
        E(f"v_lshl_or_b32 v{32+i}, v{42+2*i}, 16, v{41+2*i}")
        E(f"v_lshl_or_b32 v{36+i}, v{41+2*i}, 16, v{40+2*i}")
    E("ds_write_b128 v11, v[32:35]")
    E(f"ds_write_b128 v11, v[36:39] offset:{KX1}")
    E("s_waitcnt vmcnt(0) lgkmcnt(0)")
    E("s_barrier")
    stamp(E, 4)
    E("s_cmp_lg_u32 s52, 0")
    E("s_cbranch_scc1 K2C_NOKP")
    E("v_lshlrev_b32 v11, 4, v0")
    E(f"v_add_u32 v14, {KPB}, v11")
    E("ds_write_b128 v14, v[206:209]")
    E(f"ds_write_b128 v11, v[210:213] offset:{UR2}")
    E("v_mov_b32 v14, 0"); E("v_mov_b32 v15, 0")
    E("v_lshlrev_b32 v11, 3, v1")
    E(f"ds_write_b64 v11, v[14:15] offset:{UR2 + 4096}")
    E.label("K2C_NOKP")
    AF, BF, AC = 32, 96, 160
    def rd(rho, k):
        for i in range(4): E(f"ds_read_b32 v{AF+32*rho+4*k+i}, v12 offset:{512*k + 64*rho + 4*i}")
        E(f"ds_read_b128 v[{BF+32*rho+4*k}:{BF+32*rho+4*k+3}], v13 offset:{512*(7-k) + 64*rho}")
    def mm(rho, q, p, first):
        c = AC + 4 * (q + p); a = AF + 32 * rho + 4 * q; b = BF + 32 * rho + 4 * p
        E(f"v_mfma_f32_16x16x32_bf16 v[{c}:{c+3}], v[{a}:{a+3}], v[{b}:{b+3}], {'0' if first else f'v[{c}:{c+3}]'}")
    seen = set()
    def stage(rho, k):
        prs = [(q, p) for q in range(k + 1) for p in range(k + 1) if max(q, p) == k and q + p <= 7]
        prs.sort(key=lambda x: (x[0] + x[1] + (8 if x[0] < x[1] else 0)))
        for q, p in prs:
            mm(rho, q, p, (q + p) not in seen); seen.add(q + p)
    seq = [(rho, k) for rho in range(2) for k in range(8)]
    rd(*seq[0]); rd(*seq[1]); rd(*seq[2])
    for i, (rho, k) in enumerate(seq):
        rem = min(2, len(seq) - 1 - i)
        E(f"s_waitcnt lgkmcnt({5 * rem})")
        if i + 3 < len(seq): rd(*seq[i + 3])
        stage(rho, k)
    stamp(E, 5)
    E("s_lshl_b32 s48, s28, 13")
    E("v_add_u32 v11, s48, v4")
    for o in range(8): E(f"ds_write_b128 v11, v[{AC+4*o}:{AC+4*o+3}] offset:{o*1024}")
    E("s_lshl_b32 s48, s28, 11")
    E("v_add_u32 v11, s48, v4")
    E("v_lshlrev_b32 v12, 3, v26")
    E("v_lshl_add_u32 v12, v25, 5, v12")
    E("s_lshl_b32 s48, s28, 10")
    E("s_sub_u32 s49, s53, s48")
    E(f"s_add_u32 s49, s49, {4088 - 512}")
    E("v_sub_u32 v13, s49, v12")
    E("s_lshl_b32 s49, s29, 12")
    E("s_add_u32 s49, s49, s48")
    E(f"s_add_u32 s49, s49, {YT}")
    E("s_waitcnt lgkmcnt(0)")
    E("s_barrier")
    for e in range(2):
        for ww in range(4):
            r = 32 + 16 * e + 4 * ww
            E(f"ds_read_b128 v[{r}:{r+3}], v11 offset:{ww*8192 + e*1024}")
        E(f"ds_read_b64 v[{64+2*e}:{65+2*e}], v13 offset:{512*(1-e)}")
    for e in range(2):
        E(f"s_waitcnt lgkmcnt({5*(1-e)})")
        r = 32 + 16 * e; u = 64 + 2 * e; s = 72 + 8 * e
        for k in (0, 2):
            E(f"v_pk_add_f32 v[{r+k}:{r+k+1}], v[{r+k}:{r+k+1}], v[{r+4+k}:{r+5+k}]")
            E(f"v_pk_add_f32 v[{r+8+k}:{r+9+k}], v[{r+8+k}:{r+9+k}], v[{r+12+k}:{r+13+k}]")
        for k in (0, 2):
            E(f"v_pk_add_f32 v[{r+k}:{r+k+1}], v[{r+k}:{r+k+1}], v[{r+8+k}:{r+9+k}]")
        E(f"v_and_b32 v{s}, 0xffff0000, v{u+1}")
        E(f"v_lshlrev_b32 v{s+1}, 16, v{u+1}")
        E(f"v_and_b32 v{s+2}, 0xffff0000, v{u}")
        E(f"v_lshlrev_b32 v{s+3}, 16, v{u}")
        for k in range(4): E(f"v_mul_f32 v{s+k}, v{s+k}, v10")
        for x in (r, s):
            E(f"v_cvt_pk_bf16_f32 v{s+4}, v{x}, v{x+1}")
            E(f"v_cvt_pk_bf16_f32 v{s+5}, v{x+2}, v{x+3}")
            E(f"v_lshlrev_b32 v{x}, 16, v{s+4}")
            E(f"v_and_b32 v{x+1}, 0xffff0000, v{s+4}")
            E(f"v_lshlrev_b32 v{x+2}, 16, v{s+5}")
            E(f"v_and_b32 v{x+3}, 0xffff0000, v{s+5}")
        E(f"v_pk_add_f32 v[{r}:{r+1}], v[{r}:{r+1}], v[{s}:{s+1}]")
        E(f"v_pk_add_f32 v[{r+2}:{r+3}], v[{r+2}:{r+3}], v[{s+2}:{s+3}]")
        E(f"v_cvt_pk_bf16_f32 v{88+2*e}, v{r}, v{r+1}")
        E(f"v_cvt_pk_bf16_f32 v{89+2*e}, v{r+2}, v{r+3}")
    E("s_nop 1")
    E("v_permlane16_swap_b32 v88, v90")
    E("v_permlane16_swap_b32 v89, v91")
    E("s_nop 1")
    E("s_cmp_lg_u32 s52, 0")
    E("s_cbranch_scc1 K2C_DONE")
    stamp(E, 6)
    E("s_mov_b32 s52, 1")
    E("s_add_u32 s29, s29, 1")
    E(f"s_mov_b32 s53, {UR2}")
    E("v_mov_b32 v10, v205")
    for e in range(4): E(f"v_mov_b32 v{214+e}, v{88+e}")
    E("s_barrier")
    E("s_branch K2C_LOOP")
    E.label("K2C_DONE")
    E("v_and_b32 v12, 1, v26")
    E("v_lshlrev_b32 v12, 9, v12")
    E("v_lshl_add_u32 v12, v25, 5, v12")
    E("v_lshrrev_b32 v13, 1, v26")
    E("v_lshl_add_u32 v12, v13, 4, v12")
    E(f"buffer_store_dwordx4 v[88:91], v12, s[{SWS}:{SWS+3}], s49 offen")
    E("s_cmp_lg_u32 s54, 0")
    E("s_cbranch_scc1 K2C_FIN")
    E("s_sub_u32 s49, s49, 4096")
    E(f"buffer_store_dwordx4 v[214:217], v12, s[{SWS}:{SWS+3}], s49 offen")
    E.label("K2C_FIN")
    E("s_lshl_b32 s48, s2, 7")
    E("s_lshl_b32 s49, s28, 2")
    E("s_add_u32 s48, s48, s49")
    E(f"s_add_u32 s48, s48, {FLG}")
    stamp(E, 7)
    E("s_waitcnt vmcnt(0)")
    flag_store(E, "s48", SWS)
    for i in range(8, 12): stamp(E, i)
    stamp_flush(E, 12, SWS, 1)
    E("s_endpgm")

def gen_k2(E):
    prologue(E, "k2_kernel")
    E(f"s_cmp_ge_u32 s2, {GRID}")
    E("s_cbranch_scc1 K2_END")
    E("v_and_b32 v1, 63, v0")
    E("v_lshrrev_b32 v2, 6, v0")
    E("v_readfirstlane_b32 s28, v2")
    if os.environ.get("SWAP", "1") == "1": E("s_xor_b32 s2, s2, 256")
    E("s_cmp_ge_u32 s2, 256")
    E("s_cbranch_scc1 K2_CONV")
    gemm(E)
    E.label("K2_CONV")
    conv(E)
    E.label("K2_END")
    E("s_endpgm")
```
